```python
import torch

def _softmax(x, axis=-1):
    return torch.softmax(x, dim=axis)
def _gelu(x):
    return torch.nn.functional.gelu(x, approximate="tanh")
def _silu(x):
    return torch.nn.functional.silu(x)
def _sigmoid(x):
    return torch.sigmoid(x)
def _layernorm(x, axis=-1, eps=1e-5):
    m = x.mean(dim=axis, keepdim=True)
    v = x.var(dim=axis, keepdim=True, unbiased=False)
    return (x - m) / torch.sqrt(v + eps)
def _scatter_add(tgt, idx, src, axis=0):
    return tgt.clone().index_add_(axis, idx, src)
def _segment_sum(src, seg, n):
    out = torch.zeros((n,) + src.shape[1:], dtype=src.dtype)
    return out.index_add_(0, seg, src)
def _pad(x, pw):
    flat = tuple(v for pair in reversed(pw) for v in pair)
    return torch.nn.functional.pad(x, flat)

kernel_name = 'standalone__mha_softmax__near_ridge'

def setup_inputs():

    _w = (lambda a: (lambda t: t.to(torch.bfloat16) if t.is_floating_point() else t)(torch.as_tensor(a)))
    B, H, Sq, Sk, D = 32, 32, 384, 384, 192
    return {
        "q": _w((lambda *s: torch.randn(*s, dtype=torch.bfloat16) * 0.8)(B, H, Sq, D)),
        "k": _w((lambda *s: torch.randn(*s, dtype=torch.bfloat16) * 0.8)(B, H, Sk, D)),
        "v": _w((lambda *s: torch.randn(*s, dtype=torch.bfloat16) * 0.05)(B, H, Sk, D)),
    }

def reference(q, k, v):
    scale = q.shape[-1] ** -0.5
    scores = torch.einsum("bhqd,bhkd->bhqk", q, k) * scale
    p = _softmax(scores, axis=-1)
    return torch.einsum("bhqk,bhkd->bhqd", p, v)
```

```python
import sys, math, struct

NAME = "standalone__mha_softmax__near_ridge"
HEADB = 384 * 192 * 2
TILEB = 32 * 192 * 2
TOTB = 1024 * HEADB
NSLOT = 3
VBASE = NSLOT * TILEB
LDSB = 2 * NSLOT * TILEB

def f2u(x): return struct.unpack("<I", struct.pack("<f", x))[0]

class G:
    def __init__(s): s.l = []
    def __call__(s, x): s.l.append("    " + x)
    def lab(s, x): s.l.append(x + ":")
    def txt(s): return "\n".join(s.l) + "\n"

def gen(T=8.0, nwg=512, rounds=6, ntq=False, nto=False, ntkv=False):
    g = G()
    O = lambda d: 16 * d
    Q = lambda b: 96 + 4 * b
    F = lambda b: 144 + 4 * b
    S = 192
    P = 208
    vKr, vVr, vKd, vVd, vQO = 216, 220, 222, 225, 228
    vM, vMT, vL = 229, 230, 231
    t0, t1, t2, t3, t4, t5 = 232, 233, 234, 235, 236, 237
    r = lambda a, n: f"v[{a}:{a+n-1}]"
    sQ, sK, sV, sO = 8, 12, 16, 20
    sW, sIt, sKV, sKVn, sQo, sQn, sC, sLw, sSlot, sX = 24, 25, 26, 27, 28, 29, 30, 31, 32, 33
    sA, sB, sT = 34, 35, 36
    srd = lambda a: f"s[{a}:{a+3}]"
    NTQ = " nt" if ntq else ""
    NTO = " nt" if nto else ""
    NTKV = " nt" if ntkv else ""

    g(f"s_cmp_ge_u32 s2, {nwg}")
    g("s_cbranch_scc1 L_end")
    g("s_load_dwordx4 s[40:43], s[0:1], 0")
    g("s_load_dwordx4 s[44:47], s[0:1], 16")
    g(f"v_lshrrev_b32 v{t0}, 6, v0")
    g(f"v_and_b32 v{t1}, 63, v0")
    g(f"v_readfirstlane_b32 s{sW}, v{t0}")
    g(f"s_mov_b32 s{sC}, {f2u(math.log2(math.e) / math.sqrt(192.0)):#x}")
    g(f"s_mov_b32 s{sT}, {f2u(T):#x}")
    g(f"s_and_b32 s{sX}, s2, 7")
    g(f"s_lshr_b32 s{sSlot}, s2, 3")
    g(f"s_mov_b32 s{sIt}, 0")
    g(f"v_and_b32 v{t2}, 31, v{t1}")
    g(f"v_lshrrev_b32 v{t3}, 5, v{t1}")
    g(f"v_mul_u32_u24 v{vQO}, 384, v{t2}")
    g(f"v_lshl_add_u32 v{vQO}, v{t3}, 4, v{vQO}")
    g(f"v_bfe_u32 v{t4}, v{t2}, 1, 3")
    g(f"v_mul_u32_u24 v{t5}, 384, v{t2}")
    for b in range(4):
        g(f"v_add_u32 v{t0}, {2*b}, v{t3}")
        g(f"v_xor_b32 v{t0}, v{t0}, v{t4}")
        g(f"v_lshl_add_u32 v{vKr+b}, v{t0}, 4, v{t5}")
    g(f"v_bfe_u32 v{t0}, v{t1}, 2, 2")
    g(f"v_lshl_add_u32 v{t4}, v{t3}, 2, v{t0}")
    g(f"v_mul_u32_u24 v{t4}, 384, v{t4}")
    g(f"v_and_b32 v{t5}, 1, v{t1}")
    g(f"v_lshl_add_u32 v{t4}, v{t5}, 3, v{t4}")
    g(f"v_add_u32 v{t4}, {VBASE}, v{t4}")
    g(f"v_bfe_u32 v{t5}, v{t1}, 1, 1")
    g(f"v_bfe_u32 v{t0}, v{t1}, 4, 1")
    g(f"v_lshl_add_u32 v{t5}, v{t0}, 1, v{t5}")
    g(f"v_bfe_u32 v{t0}, v{t1}, 3, 1")
    g(f"v_lshlrev_b32 v{t0}, 2, v{t0}")
    for e in range(2):
        g(f"v_add_u32 v{t2}, {4*e}, v{t5}")
        g(f"v_xor_b32 v{t2}, v{t2}, v{t0}")
        g(f"v_lshl_add_u32 v{vVr+e}, v{t2}, 4, v{t4}")
    g(f"s_mul_i32 s{sLw}, s{sW}, 3072")
    g(f"s_lshl_b32 s{sA}, s{sW}, 2")
    for jj in range(3):
        g(f"v_add_u32 v{t0}, {jj*64}, v{t1}")
        g(f"v_mul_u32_u24 v{t2}, 2731, v{t0}")
        g(f"v_lshrrev_b32 v{t2}, 16, v{t2}")
        g(f"v_mul_u32_u24 v{t3}, 24, v{t2}")
        g(f"v_sub_u32 v{t3}, v{t0}, v{t3}")
        g(f"v_mul_u32_u24 v{t4}, 384, v{t2}")
        g(f"v_add_u32 v{t4}, s{sLw}, v{t4}")
        if jj: g(f"v_subrev_u32 v{t4}, {jj*1024}, v{t4}")
        g(f"v_lshrrev_b32 v{t5}, 1, v{t2}")
        g(f"v_add_u32 v{t0}, s{sA}, v{t5}")
        g(f"v_and_b32 v{t0}, 7, v{t0}")
        g(f"v_xor_b32 v{t0}, v{t0}, v{t3}")
        g(f"v_lshl_add_u32 v{vKd+jj}, v{t0}, 4, v{t4}")
        g(f"v_and_b32 v{t0}, 1, v{t5}")
        g(f"v_lshlrev_b32 v{t0}, 2, v{t0}")
        g(f"v_xor_b32 v{t0}, v{t0}, v{t3}")
        g(f"v_lshl_add_u32 v{vVd+jj}, v{t0}, 4, v{t4}")
    g("s_waitcnt lgkmcnt(0)")
    for (d, src) in ((sQ, 40), (sK, 42), (sV, 44), (sO, 46)):
        g(f"s_mov_b32 s{d}, s{src}")
        g(f"s_and_b32 s{d+1}, s{src+1}, 0xffff")
        g(f"s_mov_b32 s{d+2}, {TOTB}")
        g(f"s_mov_b32 s{d+3}, 0x20000")

    def blockoffs(it_reg_plus, dKV, dQ):
        g(f"s_add_u32 s{sA}, s{sIt}, {it_reg_plus}")
        g(f"s_lshl_b32 s{sA}, s{sA}, 6")
        g(f"s_add_u32 s{sA}, s{sA}, s{sSlot}")
        g(f"s_mul_hi_u32 s{sB}, s{sA}, 0x55555556")
        g(f"s_mul_i32 s{dQ}, s{sB}, 3")
        g(f"s_sub_u32 s{sA}, s{sA}, s{dQ}")
        g(f"s_lshl_b32 s{sB}, s{sB}, 3")
        g(f"s_add_u32 s{sB}, s{sB}, s{sX}")
        g(f"s_mul_i32 s{dKV}, s{sB}, {HEADB}")
        g(f"s_lshl_b32 s{sA}, s{sA}, 2")
        g(f"s_add_u32 s{sA}, s{sA}, s{sW}")
        g(f"s_mul_i32 s{sA}, s{sA}, {TILEB}")
        g(f"s_add_u32 s{dQ}, s{dKV}, s{sA}")

    def dma(tile, base_reg):
        slot = tile % NSLOT
        g(f"s_add_u32 s{sA}, s{base_reg}, {tile*TILEB}")
        g(f"s_add_u32 m0, s{sLw}, {slot*TILEB}")
        g("s_nop 0")
        for jj in range(3):
            g(f"buffer_load_dwordx4 v{vKd+jj}, {srd(sK)}, s{sA} offen offset:{jj*1024} lds{NTKV}")
        g(f"s_add_u32 m0, s{sLw}, {VBASE + slot*TILEB}")
        g("s_nop 0")
        for jj in range(3):
            g(f"buffer_load_dwordx4 v{vVd+jj}, {srd(sV)}, s{sA} offen offset:{jj*1024} lds{NTKV}")

    def qload(off_reg):
        for b in range(12):
            g(f"buffer_load_dwordx4 {r(Q(b),4)}, v{vQO}, {srd(sQ)}, s{off_reg} offen offset:{b*32}{NTQ}")

    blockoffs(0, sKV, sQo)
    dma(0, sKV)
    qload(sQo)
    dma(1, sKV)
    g("s_waitcnt vmcnt(6)")
    g("s_branch L_t0_go")

    g.lab("L_block")
    for t in range(12):
        slot = t % NSLOT
        if t == 0:
            g("s_waitcnt vmcnt(12)")
            g.lab("L_t0_go")
        elif t == 1:
            g(f"s_cmp_lg_u32 s{sIt}, 0")
            g("s_cbranch_scc1 L_t1_go")
            g("s_waitcnt vmcnt(6)")
            g.lab("L_t1_go")
        else:
            g("s_waitcnt vmcnt(6)")
        g("s_barrier")
        for b in range(12):
            g(f"ds_read_b128 {r(F(b),4)}, v{vKr+(b&3)} offset:{slot*TILEB + (b>>2)*128}")
        if t == 0:
            blockoffs(1, sKVn, sQn)
        if t == 10:
            g(f"s_cmp_eq_u32 s{sIt}, {rounds-1}")
            g(f"s_cselect_b32 s{sA}, 0, {TOTB}")
            g(f"s_mov_b32 s{sK+2}, s{sA}")
            g(f"s_mov_b32 s{sV+2}, s{sA}")
            g(f"s_mov_b32 s{sQ+2}, s{sA}")
        if t + 2 < 12: dma(t + 2, sKV)
        else: dma(t + 2 - 12, sKVn)
        for b in range(12):
            g(f"s_waitcnt lgkmcnt({11-b})")
            c = "0" if b == 0 else r(S, 16)
            g(f"v_mfma_f32_32x32x16_bf16 {r(S,16)}, {r(F(b),4)}, {r(Q(b),4)}, {c}")
        if t == 11:
            qload(sQn)
        vreads = []
        for ks in range(2):
            for d in range(6):
                for hf in range(2):
                    off = slot*TILEB + (d>>1)*128 + (16*ks + 8*hf)*384
                    vreads.append(f"ds_read_b64_tr_b16 {r(F(ks*6+d)+2*hf,2)}, v{vVr+(d&1)} offset:{off}")
        for x in vreads[:12]: g(x)
        g("s_nop 0")
        g(f"v_max3_f32 v{t0}, v{S}, v{S+1}, v{S+2}")
        g(f"v_max3_f32 v{t1}, v{S+3}, v{S+4}, v{S+5}")
        g(f"v_max3_f32 v{t0}, v{t0}, v{S+6}, v{S+7}")
        g(f"v_max3_f32 v{t1}, v{t1}, v{S+8}, v{S+9}")
        g(f"v_max3_f32 v{t0}, v{t0}, v{S+10}, v{S+11}")
        g(f"v_max3_f32 v{t1}, v{t1}, v{S+12}, v{S+13}")
        g(f"v_max3_f32 v{t0}, v{t0}, v{S+14}, v{S+15}")
        g(f"v_max_f32 v{t0}, v{t0}, v{t1}")
        g(f"v_mov_b32 v{t1}, v{t0}")
        g("s_nop 1")
        g(f"v_permlane32_swap_b32 v{t0}, v{t1}")
        g("s_nop 0")
        g(f"v_max_f32 v{t0}, v{t0}, v{t1}")
        if t == 0:
            g(f"v_mul_f32 v{vM}, s{sC}, v{t0}")
            g(f"v_add_f32 v{vMT}, s{sT}, v{vM}")
        else:
            g(f"v_mul_f32 v{t0}, s{sC}, v{t0}")
            g(f"v_cmp_gt_f32 vcc, v{t0}, v{vMT}")
            g(f"s_cbranch_vccz L_skip{t}")
            g(f"v_max_f32 v{t0}, v{t0}, v{vM}")
            g(f"v_sub_f32 v{t1}, v{vM}, v{t0}")
            g(f"v_exp_f32 v{t1}, v{t1}")
            g(f"v_mov_b32 v{vM}, v{t0}")
            g(f"v_add_f32 v{vMT}, s{sT}, v{t0}")
            g(f"v_mul_f32 v{vL}, v{vL}, v{t1}")
            for i in range(96):
                g(f"v_mul_f32 v{i}, v{i}, v{t1}")
            g.lab(f"L_skip{t}")
        g("s_waitcnt lgkmcnt(3)")
        for x in vreads[12:]: g(x)
        def half(ks):
            o = []
            b = S + 8*ks
            for i in range(8): o.append(f"v_fma_f32 v{b+i}, v{b+i}, s{sC}, -v{vM}")
            for i in range(8): o.append(f"v_exp_f32 v{b+i}, v{b+i}")
            for i in range(4): o.append(f"v_cvt_pk_bf16_f32 v{P+4*ks+i}, v{b+2*i}, v{b+2*i+1}")
            tt = t2 if ks == 0 else t3
            o.append(f"v_add_f32 v{tt}, v{b}, v{b+1}")
            o.append(f"v_add_f32 v{t4}, v{b+2}, v{b+3}")
            o.append(f"v_add_f32 v{tt}, v{tt}, v{b+4}")
            o.append(f"v_add_f32 v{t4}, v{t4}, v{b+5}")
            o.append(f"v_add_f32 v{tt}, v{tt}, v{b+6}")
            o.append(f"v_add_f32 v{t4}, v{t4}, v{b+7}")
            o.append(f"v_add_f32 v{tt}, v{tt}, v{t4}")
            if ks == 0:
                if t == 0: o.append(f"v_mov_b32 v{vL}, v{tt}")
                else: o.append(f"v_add_f32 v{vL}, v{vL}, v{tt}")
            else:
                o.append(f"v_add_f32 v{vL}, v{vL}, v{tt}")
            return o
        for x in half(0): g(x)
        h1 = half(1)
        n = len(h1); k = 0
        g("s_waitcnt lgkmcnt(12)")
        for d in range(6):
            c = "0" if t == 0 else r(O(d), 16)
            g(f"v_mfma_f32_32x32x16_bf16 {r(O(d),16)}, {r(F(d),4)}, {r(P,4)}, {c}")
            k2 = (n * (d + 1)) // 6
            for x in h1[k:k2]: g(x)
            k = k2
        for d in range(6):
            g(f"s_waitcnt lgkmcnt({10-2*d})")
            g(f"v_mfma_f32_32x32x16_bf16 {r(O(d),16)}, {r(F(6+d),4)}, {r(P+4,4)}, {r(O(d),16)}")
    g(f"v_mov_b32 v{t0}, v{vL}")
    g(f"v_mov_b32 v{t1}, v{vL}")
    g("s_nop 1")
    g(f"v_permlane32_swap_b32 v{t0}, v{t1}")
    g("s_nop 0")
    g(f"v_add_f32 v{t0}, v{t0}, v{t1}")
    g(f"v_rcp_f32 v{t0}, v{t0}")
    g("s_nop 7")
    for d in range(6):
        for pr in range(2):
            b = O(d) + 8*pr
            x = F(2*d + pr)
            for i in range(8): g(f"v_mul_f32 v{b+i}, v{b+i}, v{t0}")
            for i in range(4): g(f"v_cvt_pk_bf16_f32 v{x+i}, v{b+2*i}, v{b+2*i+1}")
            g("s_nop 1")
            g(f"v_permlane32_swap_b32 v{x}, v{x+2}")
            g(f"v_permlane32_swap_b32 v{x+1}, v{x+3}")
            g(f"buffer_store_dwordx4 {r(x,4)}, v{vQO}, {srd(sO)}, s{sQo} offen offset:{d*64+pr*32}{NTO}")
    g(f"s_add_u32 s{sIt}, s{sIt}, 1")
    g(f"s_mov_b32 s{sKV}, s{sKVn}")
    g(f"s_mov_b32 s{sQo}, s{sQn}")
    g(f"s_cmp_lt_u32 s{sIt}, {rounds}")
    g("s_cbranch_scc1 L_block")
    g.lab("L_end")
    g("s_endpgm")

    hdr = f"""; MHA forward, B*H=1024 heads, S=384, D=192, bf16.  Generated by gen/gen1.py
; @launch grid=({nwg},1,1) block=(256,1,1) lds={LDSB}
.amdgcn_target "amdgcn-amd-amdhsa--gfx950"
.text
.globl {NAME}_kernel
.p2align 8
.type {NAME}_kernel,@function
{NAME}_kernel:
"""
    ftr = f""".section .rodata,"a"
.p2align 6
.amdhsa_kernel {NAME}_kernel
  .amdhsa_next_free_vgpr 240
  .amdhsa_next_free_sgpr 64
  .amdhsa_accum_offset 240
  .amdhsa_group_segment_fixed_size 0
  .amdhsa_kernarg_size 48
  .amdhsa_user_sgpr_count 2
  .amdhsa_user_sgpr_kernarg_segment_ptr 1
  .amdhsa_system_sgpr_workgroup_id_x 1
.end_amdhsa_kernel
"""
    return hdr + g.txt() + ftr

if __name__ == "__main__":
    out = sys.argv[1]
    kw = {}
    for a in sys.argv[2:]:
        k, v = a.split("=")
        kw[k] = eval(v)
    open(out, "w").write(gen(**kw))
```

```python
import sys, math, struct

NAME = "standalone__mha_softmax__near_ridge"
HEADB = 384 * 192 * 2
TILEB = 32 * 192 * 2
TOTB = 1024 * HEADB
NSLOT = 3
VBASE = NSLOT * TILEB
LDSB = 2 * NSLOT * TILEB

def f2u(x): return struct.unpack("<I", struct.pack("<f", x))[0]

class G:
    def __init__(s, drop=()): s.l = []; s.drop = drop; s.on = False
    def __call__(s, x):
        if s.on:
            if 'comp' in s.drop and (x.startswith('v_') or x.startswith('ds_') or 'lgkmcnt' in x or 'vccz' in x): return
            if 'valu' in s.drop and x.startswith('v_') and not x.startswith('v_mfma'): return
            if 'valu' in s.drop and 'vccz' in x: return
            if 'q' in s.drop and x.startswith('buffer_load') and ' lds' not in x and ';pf' not in x: x = 's_nop 0'
            if 'st' in s.drop and x.startswith('buffer_store'): x = 's_nop 0'
            if 'dma' in s.drop and ' lds' in x: x = 's_nop 0'
        s.l.append("    " + x)
    def lab(s, x): s.l.append(x + ":")
    def txt(s): return "\n".join(s.l) + "\n"

def gen(T=8.0, nwg=512, rounds=6, ntq=False, nto=False, ntkv=False, drop=(), stamp=False, pf=0, pfq=0):
    g = G(drop)
    O = lambda d: 16 * d
    Q = lambda b: 96 + 4 * b
    F = lambda b: 144 + 4 * b
    S = 192
    P = 208
    vKr, vVr, vKd, vVd, vQO = 216, 220, 222, 225, 228
    vM, vMT, vL = 229, 230, 231
    t0, t1, t2, t3, t4, t5 = 232, 233, 234, 235, 236, 237
    r = lambda a, n: f"v[{a}:{a+n-1}]"
    sQ, sK, sV, sO = 8, 12, 16, 20
    sW, sIt, sKV, sKVn, sQo, sQn, sC, sLw, sSlot, sX = 24, 25, 26, 27, 28, 29, 30, 31, 32, 33
    sA, sB, sT = 34, 35, 36
    srd = lambda a: f"s[{a}:{a+3}]"
    NTQ = " nt" if ntq else ""
    NTO = " nt" if nto else ""
    NTKV = " nt" if ntkv else ""

    g(f"s_cmp_ge_u32 s2, {nwg}")
    g("s_cbranch_scc1 L_end")
    if stamp:
        g("s_memtime s[48:49]")
        g("s_memrealtime s[50:51]")
        g("s_load_dwordx2 s[52:53], s[0:1], 40")
    g("s_load_dwordx4 s[40:43], s[0:1], 0")
    g("s_load_dwordx4 s[44:47], s[0:1], 16")
    g(f"v_lshrrev_b32 v{t0}, 6, v0")
    g(f"v_and_b32 v{t1}, 63, v0")
    g(f"v_readfirstlane_b32 s{sW}, v{t0}")
    g(f"s_mov_b32 s{sC}, {f2u(math.log2(math.e) / math.sqrt(192.0)):#x}")
    g(f"s_mov_b32 s{sT}, {f2u(T):#x}")
    g(f"s_and_b32 s{sX}, s2, 7")
    g(f"s_lshr_b32 s{sSlot}, s2, 3")
    g(f"s_mov_b32 s{sIt}, 0")
    g(f"v_and_b32 v{t2}, 31, v{t1}")
    g(f"v_lshrrev_b32 v{t3}, 5, v{t1}")
    g(f"v_mul_u32_u24 v{vQO}, 384, v{t2}")
    g(f"v_lshl_add_u32 v{vQO}, v{t3}, 4, v{vQO}")
    g(f"v_bfe_u32 v{t4}, v{t2}, 1, 3")
    g(f"v_mul_u32_u24 v{t5}, 384, v{t2}")
    for b in range(4):
        g(f"v_add_u32 v{t0}, {2*b}, v{t3}")
        g(f"v_xor_b32 v{t0}, v{t0}, v{t4}")
        g(f"v_lshl_add_u32 v{vKr+b}, v{t0}, 4, v{t5}")
    g(f"v_bfe_u32 v{t0}, v{t1}, 2, 2")
    g(f"v_lshl_add_u32 v{t4}, v{t3}, 2, v{t0}")
    g(f"v_mul_u32_u24 v{t4}, 384, v{t4}")
    g(f"v_and_b32 v{t5}, 1, v{t1}")
    g(f"v_lshl_add_u32 v{t4}, v{t5}, 3, v{t4}")
    g(f"v_add_u32 v{t4}, {VBASE}, v{t4}")
    g(f"v_bfe_u32 v{t5}, v{t1}, 1, 1")
    g(f"v_bfe_u32 v{t0}, v{t1}, 4, 1")
    g(f"v_lshl_add_u32 v{t5}, v{t0}, 1, v{t5}")
    g(f"v_bfe_u32 v{t0}, v{t1}, 3, 1")
    g(f"v_lshlrev_b32 v{t0}, 2, v{t0}")
    for e in range(2):
        g(f"v_add_u32 v{t2}, {4*e}, v{t5}")
        g(f"v_xor_b32 v{t2}, v{t2}, v{t0}")
        g(f"v_lshl_add_u32 v{vVr+e}, v{t2}, 4, v{t4}")
    g(f"s_mul_i32 s{sLw}, s{sW}, 3072")
    g(f"s_lshl_b32 s{sA}, s{sW}, 2")
    for jj in range(3):
        g(f"v_add_u32 v{t0}, {jj*64}, v{t1}")
        g(f"v_mul_u32_u24 v{t2}, 2731, v{t0}")
        g(f"v_lshrrev_b32 v{t2}, 16, v{t2}")
        g(f"v_mul_u32_u24 v{t3}, 24, v{t2}")
        g(f"v_sub_u32 v{t3}, v{t0}, v{t3}")
        g(f"v_mul_u32_u24 v{t4}, 384, v{t2}")
        g(f"v_add_u32 v{t4}, s{sLw}, v{t4}")
        if jj: g(f"v_subrev_u32 v{t4}, {jj*1024}, v{t4}")
        g(f"v_lshrrev_b32 v{t5}, 1, v{t2}")
        g(f"v_add_u32 v{t0}, s{sA}, v{t5}")
        g(f"v_and_b32 v{t0}, 7, v{t0}")
        g(f"v_xor_b32 v{t0}, v{t0}, v{t3}")
        g(f"v_lshl_add_u32 v{vKd+jj}, v{t0}, 4, v{t4}")
        g(f"v_and_b32 v{t0}, 1, v{t5}")
        g(f"v_lshlrev_b32 v{t0}, 2, v{t0}")
        g(f"v_xor_b32 v{t0}, v{t0}, v{t3}")
        g(f"v_lshl_add_u32 v{vVd+jj}, v{t0}, 4, v{t4}")
    g("s_waitcnt lgkmcnt(0)")
    for (d, src) in ((sQ, 40), (sK, 42), (sV, 44), (sO, 46)):
        g(f"s_mov_b32 s{d}, s{src}")
        g(f"s_and_b32 s{d+1}, s{src+1}, 0xffff")
        g(f"s_mov_b32 s{d+2}, {TOTB}")
        g(f"s_mov_b32 s{d+3}, 0x20000")

    vPF, vDum = 238, 239
    sPF = 64
    sPart, sPartn = 68, 69
    if pf:
        g(f"s_cmp_eq_u32 s{sW}, 0")
        g(f"s_cselect_b32 s{sPF}, s42, s44")
        g(f"s_cselect_b32 s{sPF+1}, s43, s45")
        g(f"s_cmp_ge_u32 s{sW}, 2")
        g(f"s_cselect_b32 s{sPF}, s40, s{sPF}")
        g(f"s_cselect_b32 s{sPF+1}, s41, s{sPF+1}")
        g(f"s_cselect_b32 s{sA}, 7, 6")
        g(f"s_and_b32 s{sPF+1}, s{sPF+1}, 0xffff")
        g(f"s_mov_b32 s{sPF+2}, {TOTB}")
        g(f"s_mov_b32 s{sPF+3}, 0x20000")
        g(f"v_lshlrev_b32 v{vPF}, s{sA}, v{t1}")
    def prefetch(t):
        tt = t + pf
        if tt < 12:
            g(f"s_lshl_b32 s{sB}, s{sPart}, 12")
            g(f"s_add_u32 s{sB}, s{sB}, s{sKV}")
            g(f"s_add_u32 s{sB}, s{sB}, {tt*TILEB}")
            g(f"s_mov_b32 s70, {TOTB}")
        else:
            g(f"s_lshl_b32 s{sB}, s{sPartn}, 12")
            g(f"s_add_u32 s{sB}, s{sB}, s{sKVn}")
            g(f"s_add_u32 s{sB}, s{sB}, {(tt-12)*TILEB}")
            g(f"s_cmp_eq_u32 s{sIt}, {rounds-1}")
            g(f"s_cselect_b32 s70, 0, {TOTB}")
        if pfq and pfq <= t < pfq + 3:
            g(f"s_mul_i32 s71, s{sW}, 12288")
            g(f"s_add_u32 s71, s71, s{sQn}")
            g(f"s_sub_u32 s71, s71, {49152 - (t-pfq)*8192}")
            g(f"s_cmp_eq_u32 s{sIt}, {rounds-1}")
            g(f"s_cselect_b32 s72, 0, {TOTB}")
        else:
            g(f"s_mov_b32 s71, 0")
            g(f"s_mov_b32 s72, 0")
        g(f"s_cmp_ge_u32 s{sW}, 2")
        g(f"s_cselect_b32 s{sB}, s71, s{sB}")
        g(f"s_cselect_b32 s{sPF+2}, s72, s70")
        g(f"buffer_load_dword v{vDum}, v{vPF}, s[{sPF}:{sPF+3}], s{sB} offen ;pf")
    def blockoffs(it_reg_plus, dKV, dQ):
        g(f"s_add_u32 s{sA}, s{sIt}, {it_reg_plus}")
        g(f"s_lshl_b32 s{sA}, s{sA}, 6")
        g(f"s_add_u32 s{sA}, s{sA}, s{sSlot}")
        g(f"s_mul_hi_u32 s{sB}, s{sA}, 0x55555556")
        g(f"s_mul_i32 s{dQ}, s{sB}, 3")
        g(f"s_sub_u32 s{sA}, s{sA}, s{dQ}")
        g(f"s_mov_b32 s{sPartn if it_reg_plus else sPart}, s{sA}")
        g(f"s_lshl_b32 s{sB}, s{sB}, 3")
        g(f"s_add_u32 s{sB}, s{sB}, s{sX}")
        g(f"s_mul_i32 s{dKV}, s{sB}, {HEADB}")
        g(f"s_lshl_b32 s{sA}, s{sA}, 2")
        g(f"s_add_u32 s{sA}, s{sA}, s{sW}")
        g(f"s_mul_i32 s{sA}, s{sA}, {TILEB}")
        g(f"s_add_u32 s{dQ}, s{dKV}, s{sA}")

    def dma(tile, base_reg):
        slot = tile % NSLOT
        g(f"s_add_u32 s{sA}, s{base_reg}, {tile*TILEB}")
        g(f"s_add_u32 m0, s{sLw}, {slot*TILEB}")
        g("s_nop 0")
        for jj in range(3):
            g(f"buffer_load_dwordx4 v{vKd+jj}, {srd(sK)}, s{sA} offen offset:{jj*1024}{NTKV} lds")
        g(f"s_add_u32 m0, s{sLw}, {VBASE + slot*TILEB}")
        g("s_nop 0")
        for jj in range(3):
            g(f"buffer_load_dwordx4 v{vVd+jj}, {srd(sV)}, s{sA} offen offset:{jj*1024}{NTKV} lds")

    def qload(off_reg):
        for b in range(12):
            g(f"buffer_load_dwordx4 {r(Q(b),4)}, v{vQO}, {srd(sQ)}, s{off_reg} offen offset:{b*32}{NTQ}")

    blockoffs(0, sKV, sQo)
    dma(0, sKV)
    qload(sQo)
    dma(1, sKV)
    g("s_waitcnt vmcnt(6)")
    g("s_branch L_t0_go")

    g.lab("L_block")
    g.on = True
    for t in range(12):
        slot = t % NSLOT
        if t == 0:
            g("s_waitcnt vmcnt(12)")
            g.lab("L_t0_go")
        elif t == 1:
            g(f"s_cmp_lg_u32 s{sIt}, 0")
            g("s_cbranch_scc1 L_t1_go")
            g(f"s_waitcnt vmcnt({7 if pf else 6})")
            g.lab("L_t1_go")
        else:
            g(f"s_waitcnt vmcnt({8 if pf else 6})")
        g("s_barrier")
        for b in range(12):
            g(f"ds_read_b128 {r(F(b),4)}, v{vKr+(b&3)} offset:{slot*TILEB + (b>>2)*128}")
        if t == 0:
            blockoffs(1, sKVn, sQn)
        if t == 10:
            g(f"s_cmp_eq_u32 s{sIt}, {rounds-1}")
            g(f"s_cselect_b32 s{sA}, 0, {TOTB}")
            g(f"s_mov_b32 s{sK+2}, s{sA}")
            g(f"s_mov_b32 s{sV+2}, s{sA}")
            g(f"s_mov_b32 s{sQ+2}, s{sA}")
        if t + 2 < 12: dma(t + 2, sKV)
        else: dma(t + 2 - 12, sKVn)
        if pf: prefetch(t)
        for b in range(12):
            g(f"s_waitcnt lgkmcnt({11-b})")
            c = "0" if b == 0 else r(S, 16)
            g(f"v_mfma_f32_32x32x16_bf16 {r(S,16)}, {r(F(b),4)}, {r(Q(b),4)}, {c}")
        if t == 11:
            qload(sQn)
        vreads = []
        for ks in range(2):
            for d in range(6):
                for hf in range(2):
                    off = slot*TILEB + (d>>1)*128 + (16*ks + 8*hf)*384
                    vreads.append(f"ds_read_b64_tr_b16 {r(F(ks*6+d)+2*hf,2)}, v{vVr+(d&1)} offset:{off}")
        for x in vreads[:12]: g(x)
        g("s_nop 0")
        g(f"v_max3_f32 v{t0}, v{S}, v{S+1}, v{S+2}")
        g(f"v_max3_f32 v{t1}, v{S+3}, v{S+4}, v{S+5}")
        g(f"v_max3_f32 v{t0}, v{t0}, v{S+6}, v{S+7}")
        g(f"v_max3_f32 v{t1}, v{t1}, v{S+8}, v{S+9}")
        g(f"v_max3_f32 v{t0}, v{t0}, v{S+10}, v{S+11}")
        g(f"v_max3_f32 v{t1}, v{t1}, v{S+12}, v{S+13}")
        g(f"v_max3_f32 v{t0}, v{t0}, v{S+14}, v{S+15}")
        g(f"v_max_f32 v{t0}, v{t0}, v{t1}")
        g(f"v_mov_b32 v{t1}, v{t0}")
        g("s_nop 1")
        g(f"v_permlane32_swap_b32 v{t0}, v{t1}")
        g("s_nop 0")
        g(f"v_max_f32 v{t0}, v{t0}, v{t1}")
        if t == 0:
            g(f"v_mul_f32 v{vM}, s{sC}, v{t0}")
            g(f"v_add_f32 v{vMT}, s{sT}, v{vM}")
        else:
            g(f"v_mul_f32 v{t0}, s{sC}, v{t0}")
            g(f"v_cmp_gt_f32 vcc, v{t0}, v{vMT}")
            g(f"s_cbranch_vccz L_skip{t}")
            g(f"v_max_f32 v{t0}, v{t0}, v{vM}")
            g(f"v_sub_f32 v{t1}, v{vM}, v{t0}")
            g(f"v_exp_f32 v{t1}, v{t1}")
            g(f"v_mov_b32 v{vM}, v{t0}")
            g(f"v_add_f32 v{vMT}, s{sT}, v{t0}")
            g(f"v_mul_f32 v{vL}, v{vL}, v{t1}")
            for i in range(96):
                g(f"v_mul_f32 v{i}, v{i}, v{t1}")
            g.lab(f"L_skip{t}")
        g("s_waitcnt lgkmcnt(3)")
        for x in vreads[12:]: g(x)
        def half(ks):
            o = []
            b = S + 8*ks
            for i in range(8): o.append(f"v_fma_f32 v{b+i}, v{b+i}, s{sC}, -v{vM}")
            for i in range(8): o.append(f"v_exp_f32 v{b+i}, v{b+i}")
            for i in range(4): o.append(f"v_cvt_pk_bf16_f32 v{P+4*ks+i}, v{b+2*i}, v{b+2*i+1}")
            tt = t2 if ks == 0 else t3
            o.append(f"v_add_f32 v{tt}, v{b}, v{b+1}")
            o.append(f"v_add_f32 v{t4}, v{b+2}, v{b+3}")
            o.append(f"v_add_f32 v{tt}, v{tt}, v{b+4}")
            o.append(f"v_add_f32 v{t4}, v{t4}, v{b+5}")
            o.append(f"v_add_f32 v{tt}, v{tt}, v{b+6}")
            o.append(f"v_add_f32 v{t4}, v{t4}, v{b+7}")
            o.append(f"v_add_f32 v{tt}, v{tt}, v{t4}")
            if ks == 0:
                if t == 0: o.append(f"v_mov_b32 v{vL}, v{tt}")
                else: o.append(f"v_add_f32 v{vL}, v{vL}, v{tt}")
            else:
                o.append(f"v_add_f32 v{vL}, v{vL}, v{tt}")
            return o
        for x in half(0): g(x)
        h1 = half(1)
        n = len(h1); k = 0
        g("s_waitcnt lgkmcnt(12)")
        for d in range(6):
            c = "0" if t == 0 else r(O(d), 16)
            g(f"v_mfma_f32_32x32x16_bf16 {r(O(d),16)}, {r(F(d),4)}, {r(P,4)}, {c}")
            k2 = (n * (d + 1)) // 6
            for x in h1[k:k2]: g(x)
            k = k2
        for d in range(6):
            g(f"s_waitcnt lgkmcnt({10-2*d})")
            g(f"v_mfma_f32_32x32x16_bf16 {r(O(d),16)}, {r(F(6+d),4)}, {r(P+4,4)}, {r(O(d),16)}")
    g(f"v_mov_b32 v{t0}, v{vL}")
    g(f"v_mov_b32 v{t1}, v{vL}")
    g("s_nop 1")
    g(f"v_permlane32_swap_b32 v{t0}, v{t1}")
    g("s_nop 0")
    g(f"v_add_f32 v{t0}, v{t0}, v{t1}")
    g(f"v_rcp_f32 v{t0}, v{t0}")
    g("s_nop 7")
    for d in range(6):
        for pr in range(2):
            b = O(d) + 8*pr
            x = F(2*d + pr)
            for i in range(8): g(f"v_mul_f32 v{b+i}, v{b+i}, v{t0}")
            for i in range(4): g(f"v_cvt_pk_bf16_f32 v{x+i}, v{b+2*i}, v{b+2*i+1}")
            g("s_nop 1")
            g(f"v_permlane32_swap_b32 v{x}, v{x+2}")
            g(f"v_permlane32_swap_b32 v{x+1}, v{x+3}")
            g(f"buffer_store_dwordx4 {r(x,4)}, v{vQO}, {srd(sO)}, s{sQo} offen offset:{d*64+pr*32}{NTO}")
    g(f"s_add_u32 s{sIt}, s{sIt}, 1")
    g(f"s_mov_b32 s{sKV}, s{sKVn}")
    g(f"s_mov_b32 s{sQo}, s{sQn}")
    g(f"s_mov_b32 s{sPart}, s{sPartn}")
    g(f"s_cmp_lt_u32 s{sIt}, {rounds}")
    g("s_cbranch_scc1 L_block")
    g.on = False
    if stamp:
        g("s_memtime s[56:57]")
        g("s_memrealtime s[58:59]")
        g("s_getreg_b32 s60, hwreg(HW_REG_XCC_ID)")
        g("s_getreg_b32 s61, hwreg(HW_REG_HW_ID)")
        g("s_waitcnt lgkmcnt(0)")
        g("s_sub_u32 s56, s56, s48")
        g("s_sub_u32 s57, s58, s50")
        g("s_mov_b32 s54, 0x100000")
        g("s_mov_b32 s55, 0x20000")
        g("s_and_b32 s53, s53, 0xffff")
        g("v_mov_b32 v0, s56")
        g("v_mov_b32 v1, s57")
        g("v_mov_b32 v2, s50")
        g("v_mov_b32 v3, s60")
        g("v_mov_b32 v4, s61")
        g(f"s_lshl_b32 s62, s2, 2")
        g(f"s_add_u32 s62, s62, s{sW}")
        g(f"s_lshl_b32 s62, s62, 5")
        g("v_mov_b32 v6, 0")
        g("s_mov_b64 exec, 1")
        g("buffer_store_dwordx4 v[0:3], v6, s[52:55], s62 offen")
        g("buffer_store_dword v4, v6, s[52:55], s62 offen offset:16")
    g.lab("L_end")
    g("s_endpgm")

    hdr = f"""; MHA forward, B*H=1024 heads, S=384, D=192, bf16.  Generated by gen/gen1.py
; @launch grid=({nwg},1,1) block=(256,1,1) lds={LDSB}
.amdgcn_target "amdgcn-amd-amdhsa--gfx950"
.text
.globl {NAME}_kernel
.p2align 8
.type {NAME}_kernel,@function
{NAME}_kernel:
"""
    ftr = f""".section .rodata,"a"
.p2align 6
.amdhsa_kernel {NAME}_kernel
  .amdhsa_next_free_vgpr 240
  .amdhsa_next_free_sgpr 96
  .amdhsa_accum_offset 240
  .amdhsa_group_segment_fixed_size 0
  .amdhsa_kernarg_size 48
  .amdhsa_user_sgpr_count 2
  .amdhsa_user_sgpr_kernarg_segment_ptr 1
  .amdhsa_system_sgpr_workgroup_id_x 1
.end_amdhsa_kernel
"""
    return hdr + g.txt() + ftr

if __name__ == "__main__":
    out = sys.argv[1]
    kw = {}
    for a in sys.argv[2:]:
        k, v = a.split("=")
        kw[k] = eval(v)
    open(out, "w").write(gen(**kw))
```

```python
import sys, math, struct, re
NAME = "standalone__mha_softmax__near_ridge"
HEADB = 384 * 192 * 2
TILEB = 12288
TOTB = 1024 * HEADB
NSLOT = 12
STG = NSLOT * TILEB
LDSB = STG + 4 * 4096
def f2u(x): return struct.unpack("<I", struct.pack("<f", x))[0]

def regs(tok):
    tok = tok.strip().lstrip('-')
    m = re.match(r'^([va])\[(\d+):(\d+)\]$', tok)
    if m: return {(m.group(1), i) for i in range(int(m.group(2)), int(m.group(3)) + 1)}
    m = re.match(r'^([va])(\d+)$', tok)
    if m: return {(m.group(1), int(m.group(2)))}
    return set()

class Em:
    def __init__(s):
        s.l = []; s.hist = []
        s.nl = 0; s.ldone = 0
        s.nv = 0
    def raw(s, x): s.l.append(x)
    def lab(s, x): s.l.append(x + ":")
    def nop(s, n):
        while n > 0:
            k = min(n, 16); s.l.append(f"    s_nop {k-1}"); s.hist += [('o', set(), set(), set())] * k; n -= k
    def __call__(s, x):
        op = x.split()[0]
        ops = [o.strip() for o in x[len(op):].split(';')[0].split(',')]
        ops = [o.split()[0] if o else o for o in ops]
        wr, rd, cc = set(), set(), set()
        if op.startswith('v_mfma'):
            kind = 'm'; wr = regs(ops[0]); rd = regs(ops[1]) | regs(ops[2]); cc = regs(ops[3])
        elif op.startswith('v_permlane'):
            kind = 'p'; wr = regs(ops[0]) | regs(ops[1]); rd = set(wr)
        elif op.startswith('v_cmp'):
            kind = 'v'; rd = set().union(*[regs(o) for o in ops[1:]])
        elif op.startswith('v_'):
            kind = 't' if op in ('v_exp_f32', 'v_rcp_f32') else 'v'
            wr = regs(ops[0]); rd = set().union(*[regs(o) for o in ops[1:]])
        elif op.startswith('ds_read'):
            kind = 'd'; wr = regs(ops[0]); rd = regs(ops[1])
        elif op.startswith('ds_write'):
            kind = 'd'; rd = regs(ops[0]) | regs(ops[1])
        elif op.startswith('buffer_store'):
            kind = 's'; rd = regs(ops[0]) | regs(ops[1])
        elif op.startswith('buffer_load'):
            kind = 'l'; rd = regs(ops[0])
        else:
            kind = 'M' if ops[0] == 'm0' else 'o'
        need = 0
        for d, (k, w, r, c) in enumerate(reversed(s.hist[-20:])):
            q = 0
            if k == 'm':
                if kind == 'm':
                    if w & rd: q = 12
                    elif (w & cc) and w != cc: q = 10
                    elif (w & wr) and w != wr: q = 12
                elif w & (rd | wr): q = 12
            if k in 'vtp' and kind == 'm' and (w & (rd | cc)): q = max(q, 2)
            if k == 't' and kind in 'vpm' and (w & rd): q = max(q, 1)
            if k in 'vtp' and kind == 'p' and (w & rd): q = max(q, 2)
            if k == 's' and kind in 'vtp' and (r & wr): q = max(q, 2)
            if k == 'M' and kind == 'l': q = max(q, 1)
            need = max(need, q - d)
        if need > 0: s.nop(need)
        s.l.append("    " + x); s.hist.append((kind, wr, rd, cc))
        if kind == 'd': s.nl += 1; return s.nl
        if kind in 'sl': s.nv += 1; return s.nv
    def need_lds(s, i):
        if i > s.ldone:
            n = min(s.nl - i, 15); s(f"s_waitcnt lgkmcnt({n})"); s.ldone = s.nl - n
    def need_vm(s, i):
        n = s.nv - i; assert n >= 0
        s(f"s_waitcnt vmcnt({min(n, 63)})")

def gen(T=8.0, nwg=256, nld="nt", nst="nt", stamp=False, drop=(), wq=1.0, wp=0.8, sm0=2, nheads=4, dq2=6):
    e = Em()
    AG = {(0,3):0, (0,5):1, (1,3):2, (1,5):3, (2,3):4, (2,5):5, (2,4):6}
    vmap = {}; n = 0
    for x in range(3):
        for d in range(6):
            if (x, d) not in AG: vmap[(x, d)] = 16 * n; n += 1
    def Oreg(x, d): return ('a', 144 + 16 * AG[(x, d)]) if (x, d) in AG else ('v', vmap[(x, d)])
    def Or(x, d): f, b = Oreg(x, d); return f"{f}[{b}:{b+15}]"
    Qr = lambda x, b: f"a[{48*x+4*b}:{48*x+4*b+3}]"
    S = lambda x: 176 + 16 * x
    Fr = lambda i: 224 + 4 * (i % 4)
    vKr, vVr, vKd, vVd, vM, vL, t0, t1 = 240, 244, 246, 247, 248, 251, 254, 255
    r = lambda a, n: f"v[{a}:{a+n-1}]"
    SRD = {('Q',0):8, ('K',0):12, ('V',0):16, ('Q',1):64, ('K',1):68, ('V',1):72}
    sO = 20
    sW, sIt, sH0, sH1, sHp, sC, sLw, sT, sA, sB, sStg, sOw = 24, 25, 26, 27, 28, 29, 30, 31, 32, 33, 34, 35
    srd = lambda a: f"s[{a}:{a+3}]"
    NL = (" " + nld) if nld else ""; NS = (" " + nst) if nst else ""

    e(f"s_cmp_ge_u32 s2, {nwg}"); e("s_cbranch_scc1 L_end")
    if stamp:
        e("s_memtime s[48:49]"); e("s_memrealtime s[50:51]"); e(f"s_load_dwordx2 s[52:53], s[0:1], {32 if stamp == 2 else 40}")
    e("s_load_dwordx4 s[40:43], s[0:1], 0"); e("s_load_dwordx4 s[44:47], s[0:1], 16")
    a, b, c, d, L = 1, 2, 3, 4, 5
    e(f"v_lshrrev_b32 v{a}, 6, v0"); e(f"v_and_b32 v{L}, 63, v0"); e(f"v_readfirstlane_b32 s{sW}, v{a}")
    e(f"s_mov_b32 s{sC}, {f2u(math.log2(math.e) / math.sqrt(192.0)):#x}"); e(f"s_mov_b32 s{sT}, {f2u(T):#x}")
    e(f"s_mov_b32 s{sIt}, 0")
    e(f"v_bfe_u32 v{a}, v{L}, 3, 2"); e(f"v_mul_u32_u24 v{a}, 3072, v{a}")
    e(f"v_and_b32 v{b}, 7, v{L}"); e(f"v_lshl_add_u32 v{a}, v{b}, 7, v{a}")
    e(f"v_bfe_u32 v{b}, v{L}, 1, 3"); e(f"v_lshrrev_b32 v{c}, 5, v{L}"); e(f"v_xor_b32 v{b}, v{b}, v{c}")
    for i in range(4):
        e(f"v_xor_b32 v{d}, {2*i}, v{b}"); e(f"v_lshl_add_u32 v{vKr+i}, v{d}, 4, v{a}")
    e(f"v_bfe_u32 v{a}, v{L}, 2, 2"); e(f"v_lshl_add_u32 v{a}, v{c}, 2, v{a}"); e(f"v_lshlrev_b32 v{a}, 7, v{a}")
    e(f"v_and_b32 v{b}, 1, v{L}"); e(f"v_lshl_add_u32 v{a}, v{b}, 3, v{a}")
    e(f"v_bfe_u32 v{b}, v{L}, 1, 1"); e(f"v_bfe_u32 v{d}, v{L}, 4, 1"); e(f"v_lshl_add_u32 v{b}, v{d}, 1, v{b}")
    e(f"v_bfe_u32 v{d}, v{L}, 3, 1"); e(f"v_lshl_add_u32 v{b}, v{d}, 2, v{b}")
    for i in range(2):
        e(f"v_xor_b32 v{d}, {4*i}, v{b}"); e(f"v_lshl_add_u32 v{vVr+i}, v{d}, 4, v{a}")
    e(f"s_mul_i32 s{sLw}, s{sW}, 3072"); e(f"s_lshl_b32 s{sA}, s{sW}, 2")
    e(f"v_lshrrev_b32 v{a}, 3, v{L}"); e(f"v_mul_u32_u24 v{a}, 384, v{a}"); e(f"v_add_u32 v{a}, s{sLw}, v{a}")
    e(f"v_and_b32 v{b}, 7, v{L}"); e(f"v_lshrrev_b32 v{c}, 4, v{L}")
    e(f"v_add_u32 v{d}, s{sA}, v{c}"); e(f"v_and_b32 v{d}, 7, v{d}"); e(f"v_xor_b32 v{d}, v{d}, v{b}")
    e(f"v_lshl_add_u32 v{vKd}, v{d}, 4, v{a}")
    e(f"v_and_b32 v{d}, 1, v{c}"); e(f"v_lshlrev_b32 v{d}, 2, v{d}"); e(f"v_xor_b32 v{d}, v{d}, v{b}")
    e(f"v_lshl_add_u32 v{vVd}, v{d}, 4, v{a}")
    e(f"s_lshl_b32 s{sStg}, s{sW}, 12"); e(f"s_add_u32 s{sStg}, s{sStg}, {STG}")
    e(f"s_mul_i32 s{sOw}, s{sW}, {3*TILEB}")
    e(f"s_mul_i32 s{sH1}, s2, {HEADB}"); e(f"s_mov_b32 s{sH0}, s{sH1}"); e(f"s_mov_b32 s{sHp}, s{sH1}")
    e("s_waitcnt lgkmcnt(0)")
    for (dd, src, nr) in ((8,40,0), (12,42,0), (16,44,0), (64,40,TOTB), (68,42,TOTB), (72,44,TOTB), (sO,46,0)):
        e(f"s_mov_b32 s{dd}, s{src}"); e(f"s_and_b32 s{dd+1}, s{src+1}, 0xffff"); e(f"s_mov_b32 s{dd+2}, {nr}"); e(f"s_mov_b32 s{dd+3}, 0x20000")

    def bar(period, which):
        return 2 * (period + 1) + (0 if which == 2 else 1)
    stream = []
    for h in range(-1, 4):
        o = 12 * h
        for j in range(12):
            if j == 11:
                pass
            if j == 11:
                for w in range(4): stream.append(('Q', h+1, 3*w+1, bar(o+10,2), bar(o+10,5)))
            if j == 0:
                for w in range(4): stream.append(('Q', h, 3*w+2, bar(o-1,2), bar(o-1,5)))
            stream.append(('V', h, j, bar(o+j-1,2), bar(o+j,5)))
            hh, jj = (h, j+1) if j < 11 else (h+1, 0)
            stream.append(('K', hh, jj, bar(o+j-1,5), bar(o+j,5)))
            if j == 10:
                for w in range(4): stream.append(('Q', h+1, 3*w+0, bar(o+9,5), bar(o+10,2)))
    idx = {(k, h, i): n for n, (k, h, i, _, _) in enumerate(stream)}
    slot = lambda k, h, i: idx[(k, h, i)] % NSLOT
    assert slot('K', 1, 0) == slot('K', 0, 0)
    st = dict(next=0, kb=0, vb=0, freed=-1, dq=[])
    vmid = {}
    def allow(barno):
        while st['next'] < len(stream):
            n = st['next']
            if n >= NSLOT and stream[n - NSLOT][4] > barno: break
            assert stream[n][3] > barno or stream[n][1] < 0 or barno < 0, (stream[n], barno)
            for seg in range(3): st['dq'].append((n, seg))
            st['next'] += 1
    def dma(n, seg, bodyhead, part=3):
        k, h, i, _, _ = stream[n]
        rel = h - bodyhead; assert rel in (0, 1), (stream[n], bodyhead)
        if part & 1:
            e(f"s_add_u32 m0, s{sLw}, {(n % NSLOT)*TILEB + seg*896}")
            if seg == 0: e(f"s_add_u32 s{sB}, s{sH1 if rel else sH0}, {i*TILEB}")
        if not part & 2: return
        if 'dma' in drop: e("s_nop 0"); vmid[n] = e.nv; return
        vmid[n] = e(f"buffer_load_dwordx4 v{vVd if k == 'V' else vKd}, {srd(SRD[(k, rel)])}, s{sB} offen offset:{seg*128}{NL} lds")
    def rebase(which, s):
        key, reg, n = ('kb', vKr, 4) if which == 'K' else ('vb', vVr, 2)
        dlt = (s - st[key]) * TILEB
        if dlt:
            for i in range(n): e(f"v_add_u32 v{reg+i}, {dlt & 0xffffffff:#x}, v{reg+i}")
        st[key] = s
    def kread(dst, s, b):
        if not (0 <= s - st['kb'] <= 5): rebase('K', s)
        return e(f"ds_read_b128 {dst}, v{vKr+(b&3)} offset:{(s-st['kb'])*TILEB + (b>>2)*1024}")
    def vread(i, s):
        ks, d = divmod(i, 6)
        if not (0 <= s - st['vb'] <= 4): rebase('V', s)
        for hf in range(2):
            x = e(f"ds_read_b64_tr_b16 {r(Fr(i)+2*hf,2)}, v{vVr+(d&1)} offset:{(s-st['vb'])*TILEB + (2*ks+hf)*3072 + (d>>1)*1024}")
        return x
    slow = []
    def softmax(x, first, tag):
        s = S(x); o = []
        o.append(f"v_max3_f32 v{t0}, v{s}, v{s+1}, v{s+2}")
        for i in range(3, 15, 2): o.append(f"v_max3_f32 v{t0}, v{t0}, v{s+i}, v{s+i+1}")
        o.append(f"v_max_f32 v{t0}, v{t0}, v{s+15}")
        if first:
            o += [f"v_mov_b32 v{t1}, v{t0}", f"v_permlane32_swap_b32 v{t0}, v{t1}", f"v_max_f32 v{t0}, v{t0}, v{t1}", f"v_mul_f32 v{vM+x}, s{sC}, v{t0}"]
        else:
            o += [f"v_fma_f32 v{t1}, v{t0}, s{sC}, -v{vM+x}", f"v_cmp_lt_f32 vcc, s{sT}, v{t1}", ('slow', x, tag)]
        def fin(j):
            q = []
            if first and j == 0: q.append(f"v_add_f32 v{vL+x}, v{s}, v{s+1}")
            else: q += [f"v_add_f32 v{vL+x}, v{vL+x}, v{s+2*j}", f"v_add_f32 v{vL+x}, v{vL+x}, v{s+2*j+1}"]
            q.append(f"v_cvt_pk_bf16_f32 v{s+j}, v{s+2*j}, v{s+2*j+1}")
            return q
        for j in range(8):
            o += [f"v_fma_f32 v{s+2*j}, v{s+2*j}, s{sC}, -v{vM+x}", f"v_fma_f32 v{s+2*j+1}, v{s+2*j+1}, s{sC}, -v{vM+x}",
                  f"v_exp_f32 v{s+2*j}, v{s+2*j}", f"v_exp_f32 v{s+2*j+1}, v{s+2*j+1}"]
            if j: o += fin(j - 1)
        o += fin(7)
        return o
    def epilogue(x):
        B0 = Oreg(x, 0)[1]; Tm = Oreg(x, 1)[1]
        inv, aW, aR, aS, aT = B0+8, B0+9, B0+10, B0+11, B0+12
        l = vL + x; o = []
        o += [f"v_mov_b32 v{t1}, v{l}", f"v_permlane32_swap_b32 v{l}, v{t1}", f"v_add_f32 v{l}, v{l}, v{t1}", f"v_rcp_f32 v{l}, v{l}"]
        def block(d, iv):
            f, b = Oreg(x, d); q = []
            if f == 'a':
                for i in range(16): q.append(f"v_accvgpr_read_b32 v{Tm+i}, a{b+i}")
                b = Tm
            for i in range(16): q.append(f"v_mul_f32 v{b+i}, v{b+i}, v{iv}")
            for i in range(8): q.append(f"v_cvt_pk_bf16_f32 v{b+i}, v{b+2*i}, v{b+2*i+1}")
            for p in range(2):
                q += [f"v_permlane32_swap_b32 v{b+4*p}, v{b+4*p+2}", f"v_permlane32_swap_b32 v{b+4*p+1}, v{b+4*p+3}"]
            w = []
            for p in range(2):
                cst = ((d & 1) * 4 + p * 2) * 16
                w += [f"v_xor_b32 v{aT+p}, {cst}, v{aW}", f"ds_write_b128 v{aT+p}, {r(b+4*p,4)}"]
            return q, w
        q, w = block(0, l)
        o += q
        o.append(f"v_mov_b32 v{inv}, v{l}")
        n1 = len(o)
        o += [f"v_mbcnt_lo_u32_b32 v{aT}, -1, 0", f"v_mbcnt_hi_u32_b32 v{aT}, -1, v{aT}",
              f"v_lshrrev_b32 v{aT+1}, 5, v{aT}", f"v_xor_b32 v{aT+1}, v{aT+1}, v{aT}", f"v_and_b32 v{aT+1}, 7, v{aT+1}",
              f"v_and_b32 v{aW}, 31, v{aT}", f"v_lshlrev_b32 v{aW}, 7, v{aW}", f"v_lshl_add_u32 v{aW}, v{aT+1}, 4, v{aW}", f"v_add_u32 v{aW}, s{sStg}, v{aW}",
              f"v_lshrrev_b32 v{aT+1}, 3, v{aT}", f"v_xor_b32 v{aR}, v{aT+1}, v{aT}", f"v_and_b32 v{aR}, 7, v{aR}", f"v_lshlrev_b32 v{aR}, 4, v{aR}",
              f"v_lshl_add_u32 v{aR}, v{aT+1}, 7, v{aR}", f"v_add_u32 v{aR}, s{sStg}, v{aR}",
              f"v_mul_u32_u24 v{aS}, 384, v{aT+1}", f"v_and_b32 v{aT}, 7, v{aT}", f"v_lshl_add_u32 v{aS}, v{aT}, 4, v{aS}", f"v_add_u32 v{aS}, s{sOw}, v{aS}"]
        o += w
        for k in range(3):
            for d in (2*k, 2*k+1):
                if d == 0: continue
                q, w = block(d, inv); o += q + w
            for j in range(4): o.append(('rb', f"ds_read_b128 {r(Tm+4*j,4)}, v{aR} offset:{j*1024}", (x, k, j)))
            for j in range(4):
                o.append(('st', f"s_add_u32 s{sA}, s{sHp}, {x*TILEB + j*3072}", f"buffer_store_dwordx4 {r(Tm+4*j,4)}, v{aS}, {srd(sO)}, s{sA} offen offset:{k*128}{NS}", (x, k, j)))
        return o, n1
    rbid = {}
    def emit(it):
        if isinstance(it, str): e(it); return
        if it[0] == 'slow':
            e(f"s_cbranch_vccnz L_slow{it[2]}"); e.lab(f"L_ret{it[2]}"); slow.append((it[1], it[2]))
        elif it[0] == 'rb': rbid[it[2]] = e(it[1])
        elif it[0] == 'st':
            e(it[1]); e.need_lds(rbid[it[3]])
            if 'st' in drop: e("s_nop 0")
            else: e(it[2])
        elif it[0] == 'q': qid[it[1]] = kread(Qr(it[1], it[2]), it[3], it[2])
    cost = lambda it: 2.0 if isinstance(it, str) and it.startswith('v_exp') else 1.0
    def split(items, g0, g1):
        tot = sum(cost(i) for i in items)
        w = [(wq if (g // 12) % 2 == 0 else wp) for g in range(g0, g1)]
        W = sum(w); acc = 0; k = 0; lim = 0
        for gi, g in enumerate(range(g0, g1)):
            lim += w[gi] / W * tot
            while k < len(items) and (acc + cost(items[k]) / 2 <= lim or gi == g1 - g0 - 1):
                fill[g].append(items[k]); acc += cost(items[k]); k += 1
    qid = {}
    fid = {}
    def group_desc(G, H):
        if G >= 72: return group_desc(G - 72, H + 1)
        P, g = divmod(G, 6)
        if g % 2 == 0: return ('K', g // 2, H, P)
        x = {1: 1, 3: 2, 5: 0}[g]
        if g == 5: return ('V', 0, H, P)
        return ('V', x, H, P - 1) if P > 0 else ('V', x, H - 1, 11)
    def fragread(G, i, H):
        ty, x, h, t = group_desc(G, H)
        if ty == 'K': fid[(G, i)] = kread(r(Fr(i), 4), slot('K', h, t), i)
        else: fid[(G, i)] = vread(i, slot('V', h, t))
    def body(H, ngroups=72):
        nonlocal fill
        fill = [[] for _ in range(72 * 12 + 48)]
        tailitems = []
        for G in range(72):
            ty, x, h, t = group_desc(G, H)
            if ty == 'K' and 'sm' not in drop:
                split(softmax(x, t == 0, f"{G}"), (G + 1) * 12 + sm0, (G + 3) * 12)
        wrap = fill[72*12:72*12+12]
        for x in range(3):
            o, n1 = epilogue(x)
            if 'ep' in drop: continue
            g0 = 2 * x
            split(o[:n1], g0 * 12 + 1, g0 * 12 + 12)
            split(o[n1:], 12 + 32 * x, min(44 + 32 * x, 106))
        for (x, G) in ((2, 3), (0, 67), (1, 69)):
            hh = H if x == 2 else H + 1
            split([('q', x, b, None, hh) for b in range(12)], G * 12, G * 12 + 12)
        for i in range(12): fill[i] = st.get('wrap', [[]] * 12)[i] + fill[i]
        st['wrap'] = wrap
        for G in range(72):
            ty, x, h, t = group_desc(G, H)
            P, g = divmod(G, 6)
            if G == 6:
                e(f"s_cmp_eq_u32 s{sIt}, {nheads}"); e("s_cbranch_scc1 L_tail")
                st['tail'] = [it for gg in range(72, 12 * 12) for it in fill[gg] if not (isinstance(it, tuple) and it[0] in ('slow', 'q')) and not is_sm(it)]
                st['tailstate'] = (e.nl, e.ldone, dict(rbid), list(e.hist[-20:]))
            if G == 10:
                e(f"s_mov_b32 s{sHp}, s{sH0}"); e(f"s_mov_b32 s{sO+2}, {TOTB}")
            for i in range(12):
                if ty == 'K' and i == 0 and t == 0: e.need_lds(qid[x])
                e.need_lds(fid[(G, i)])
                if ty == 'K':
                    e(f"v_mfma_f32_32x32x16_bf16 {r(S(x),16)}, {r(Fr(i),4)}, {Qr(x,i)}, {'0' if i == 0 else r(S(x),16)}")
                else:
                    ks, d = divmod(i, 6)
                    e(f"v_mfma_f32_32x32x16_bf16 {Or(x,d)}, {r(Fr(i),4)}, {r(S(x)+4*ks,4)}, {'0' if (t == 0 and ks == 0) else Or(x,d)}")
                if i == 7 and g in (2, 5):
                    bn = 24 * H + 2 * P + (0 if g == 2 else 1)
                    req = [n for n, tl in enumerate(stream) if tl[3] == bn]
                    if req: e.need_vm(max(vmid[n] for n in req))
                    e("s_barrier"); allow(bn)
                if st['dq']: dma(*st['dq'][0], H, 1)
                if i < 8: fragread(G, i + 4, H)
                else: fragread(G + 1, i - 8, H)
                if G == 71 and i >= 8: fid[(0, i - 8)] = fid[(72, i - 8)]
                for it in fill[G * 12 + i]:
                    if isinstance(it, tuple) and it[0] == 'q':
                        qread(it[1], it[2], it[4], S(x) + 14)
                    else: emit(it)
                for k_ in range(2 if len(st['dq']) > dq2 else 1):
                    if st['dq']:
                        n, seg = st['dq'].pop(0); dma(n, seg, H, 3 if k_ else 2)
        rebase('K', st['kb0']); rebase('V', st['vb0'])
    smset = set(range(176, 224)) | {t0} | set(range(vM, vM + 3))
    def is_sm(it):
        if not isinstance(it, str): return False
        return any(k == 'v' and i in smset for o in it.replace(',', ' ').split() for (k, i) in regs(o))
    def qread(x, b, hh, tmp):
        s0 = slot('Q', hh, x)
        assert all(slot('Q', hh, 3*w+x) == s0 + w for w in range(4)), "Q slots wrap"
        dl = (s0 - st['kb']) * TILEB
        if b == 0 or st['qd'] != dl:
            e(f"s_add_u32 s37, s{sQw}, {dl & 0xffffffff:#x}"); st['qd'] = dl
        e(f"v_add_u32 v{tmp+(b&1)}, s37, v{vKr+(b&3)}")
        qid[x] = e(f"ds_read_b128 {Qr(x,b)}, v{tmp+(b&1)} offset:{(b>>2)*1024}")
    sQw = 36
    e(f"s_mul_i32 s{sQw}, s{sW}, {TILEB}")
    fill = None
    return e, locals()

def build(**kw):
    e, L = gen(**kw)
    st, stream, vmid, NS_ = L['st'], L['stream'], L['vmid'], NSLOT
    body, dma, allow, idx, slot = L['body'], L['dma'], L['allow'], L['idx'], L['slot']
    nheads = kw.get('nheads', 4); nwg = kw.get('nwg', 256); stamp = kw.get('stamp', False)
    sIt, sH0, sH1, sW, sO = 25, 26, 27, 24, 20
    pro = list(e.l)
    st['kb0'] = st['kb'] = slot('K', 0, 0); st['vb0'] = st['vb'] = slot('V', -1, 11)
    first = idx[('Q', 0, 0)]
    st['next'] = first
    e.l = []
    L['rebase']
    st['kb'] = 0; st['vb'] = 0
    n0 = idx[('Q', 0, 2)]
    order = [n for n in range(first, n0 + 2) if stream[n][1] == 0]
    for n in order:
        for seg in range(3): dma(n, seg, -1)
    vmid[idx[('V', -1, 11)]] = 0
    e.need_vm(vmid[idx[('K', 0, 0)]]); e("s_barrier")
    for x in range(2):
        for b in range(12): L['qread'](x, b, 0, 176)
    L['rebase']('K', st['kb0']); L['rebase']('V', st['vb0'])
    for i in range(4): L['fid'][(0, i)] = L['kread'](f"v[{224+4*i}:{227+4*i}]", slot('K', 0, 0), i)
    e("s_waitcnt lgkmcnt(0)"); e.ldone = e.nl
    e("s_barrier")
    st['next'] = n0 + 2
    allow(-1)
    pre_A = list(e.l); nvA = e.nv; dqA = list(st['dq']); vmA = dict(vmid); nxA = st['next']
    e.l = []; L['slow'].clear()
    body(0)
    rem = len(st['dq'])
    wrap = st['wrap']
    e.l = pro + pre_A; e.nv = nvA; st['dq'] = dqA; vmid.clear(); vmid.update(vmA); st['next'] = nxA
    while len(st['dq']) > rem:
        n, seg = st['dq'].pop(0); dma(n, seg, -1)
    assert len(st['dq']) == rem
    def advance():
        e(f"s_mov_b32 s{sH0}, s{sH1}")
        for k in (8, 12, 16): e(f"s_mov_b32 s{k+2}, s{64+2}")
        e(f"s_add_u32 s{sH1}, s{sH1}, {nwg*HEADB}")
        e(f"s_cmp_lt_u32 s{sIt}, {nheads-1}")
        e(f"s_cselect_b32 s32, {TOTB}, 0")
        e(f"s_cselect_b32 s{sH1}, s{sH1}, s{sH0}")
        for k in (64, 68, 72): e(f"s_mov_b32 s{k+2}, s32")
    e.ldone = e.nl
    e.lab("L_loop")
    advance()
    e.nop(8)
    L['slow'].clear(); st['wrap'] = wrap
    e.ldone = 0 if False else e.ldone
    for i in range(4): e.nl += 1; L['fid'][(0, i)] = e.nl
    e.ldone = e.nl - 4 - 64
    body(0)
    assert len(st['dq']) == rem
    e(f"s_add_u32 s{sIt}, s{sIt}, 1")
    e("s_branch L_loop")
    e.lab("L_tail")
    e.nl, e.ldone, rb, e.hist = st['tailstate']; L['rbid'].update(rb)
    e.nop(12)
    for it in st['tail']: L['emit'](it)
    if stamp:
        e("s_waitcnt vmcnt(0)")
        e("s_memtime s[56:57]"); e("s_memrealtime s[58:59]"); e("s_waitcnt lgkmcnt(0)")
        e("s_sub_u32 s56, s56, s48"); e("s_sub_u32 s57, s58, s50"); e(f"s_mov_b32 s54, {64 if stamp == 2 else 0x100000}"); e("s_mov_b32 s55, 0x20000"); e("s_and_b32 s53, s53, 0xffff")
        e("v_mov_b32 v0, s56"); e("v_mov_b32 v1, s57"); e("v_mov_b32 v2, s50"); e("v_mov_b32 v3, 0")
        e(f"s_lshl_b32 s62, s2, 2"); e(f"s_add_u32 s62, s62, s{sW}"); e(f"s_lshl_b32 s62, s62, {2 if stamp == 2 else 5}"); e("v_mov_b32 v6, s62"); e("s_mov_b64 exec, 1")
        e("buffer_store_dwordx4 v[0:3], v6, s[52:55], 0 offen") if stamp != 2 else (e(f"s_cmp_eq_u32 s{sW}, 0"), e("s_cbranch_scc0 L_end"), e("buffer_store_dwordx4 v[0:3], v6, s[52:55], 0 offen"))
    e.lab("L_end"); e("s_endpgm")
    t0, t1, vM, vL, sC = 254, 255, 248, 251, 29
    for (x, tag) in L['slow']:
        e.lab(f"L_slow{tag}"); e.hist = []
        e.nop(2)
        for s_ in (f"v_mov_b32 v{t1}, v{t0}", f"v_permlane32_swap_b32 v{t0}, v{t1}", f"v_max_f32 v{t0}, v{t0}, v{t1}", f"v_mul_f32 v{t0}, s{sC}, v{t0}",
                   f"v_max_f32 v{t0}, v{t0}, v{vM+x}", f"v_sub_f32 v{t1}, v{vM+x}, v{t0}", f"v_exp_f32 v{t1}, v{t1}", f"v_mov_b32 v{vM+x}, v{t0}"): e(s_)
        e(f"v_mul_f32 v{vL+x}, v{vL+x}, v{t1}")
        for d in range(6):
            f, b = L['Oreg'](x, d)
            for i in range(16):
                if f == 'v': e(f"v_mul_f32 v{b+i}, v{b+i}, v{t1}")
                else:
                    e(f"v_accvgpr_read_b32 v{t0}, a{b+i}"); e(f"v_mul_f32 v{t0}, v{t0}, v{t1}"); e(f"v_accvgpr_write_b32 a{b+i}, v{t0}")
        e.nop(2)
        e(f"s_branch L_ret{tag}")
    hdr = f"""; MHA forward, B*H=1024 heads, S=384, D=192, bf16.  Generated by gen/gen2.py
; @launch grid=({nwg},1,1) block=(256,1,1) lds={LDSB}
.amdgcn_target "amdgcn-amd-amdhsa--gfx950"
.text
.globl {NAME}_kernel
.p2align 8
.type {NAME}_kernel,@function
{NAME}_kernel:
"""
    ftr = f"""
.section .rodata,"a"
.p2align 6
.amdhsa_kernel {NAME}_kernel
  .amdhsa_next_free_vgpr 512
  .amdhsa_next_free_sgpr 96
  .amdhsa_accum_offset 256
  .amdhsa_group_segment_fixed_size 0
  .amdhsa_kernarg_size 48
  .amdhsa_user_sgpr_count 2
  .amdhsa_user_sgpr_kernarg_segment_ptr 1
  .amdhsa_system_sgpr_workgroup_id_x 1
.end_amdhsa_kernel
"""
    return hdr + "\n".join(e.l) + ftr

if __name__ == "__main__":
    kw = {}
    for a in sys.argv[2:]:
        k, v = a.split("="); kw[k] = eval(v)
    open(sys.argv[1], "w").write(build(**kw))
```

```python
import sys, math, struct, re
NAME = "standalone__mha_softmax__near_ridge"
HEADB = 384 * 192 * 2
TILEB = 12288
TOTB = 1024 * HEADB
NSLOT = 13
LDSB = NSLOT * TILEB
def f2u(x): return struct.unpack("<I", struct.pack("<f", x))[0]

def regs(tok):
    tok = tok.strip().lstrip('-')
    m = re.match(r'^([va])\[(\d+):(\d+)\]$', tok)
    if m: return {(m.group(1), i) for i in range(int(m.group(2)), int(m.group(3)) + 1)}
    m = re.match(r'^([va])(\d+)$', tok)
    if m: return {(m.group(1), int(m.group(2)))}
    return set()

class Em:
    def __init__(s):
        s.l = []; s.hist = []
        s.nl = 0; s.ldone = 0
        s.nv = 0
    def raw(s, x): s.l.append(x)
    def lab(s, x): s.l.append(x + ":")
    def nop(s, n):
        while n > 0:
            k = min(n, 16); s.l.append(f"    s_nop {k-1}"); s.hist += [('o', set(), set(), set())] * k; n -= k
    def __call__(s, x):
        op = x.split()[0]
        ops = [o.strip() for o in x[len(op):].split(';')[0].split(',')]
        ops = [o.split()[0] if o else o for o in ops]
        wr, rd, cc = set(), set(), set()
        if op.startswith('v_mfma'):
            kind = 'm'; wr = regs(ops[0]); rd = regs(ops[1]) | regs(ops[2]); cc = regs(ops[3])
        elif op.startswith('v_permlane'):
            kind = 'p'; wr = regs(ops[0]) | regs(ops[1]); rd = set(wr)
        elif op.startswith('v_cmp'):
            kind = 'v'; rd = set().union(*[regs(o) for o in ops[1:]])
        elif op.startswith('v_'):
            kind = 't' if op in ('v_exp_f32', 'v_rcp_f32') else 'v'
            wr = regs(ops[0]); rd = set().union(*[regs(o) for o in ops[1:]])
        elif op.startswith('ds_read'):
            kind = 'd'; wr = regs(ops[0]); rd = regs(ops[1])
        elif op.startswith('ds_write'):
            kind = 'd'; rd = regs(ops[0]) | regs(ops[1])
        elif op.startswith('buffer_store'):
            kind = 's'; rd = regs(ops[0]) | regs(ops[1])
        elif op.startswith('buffer_load'):
            kind = 'l'; rd = regs(ops[0])
        else:
            kind = 'M' if ops[0] == 'm0' else 'o'
        need = 0
        for d, (k, w, r, c) in enumerate(reversed(s.hist[-20:])):
            q = 0
            if k == 'm':
                if kind == 'm':
                    if w & rd: q = 12
                    elif (w & cc) and w != cc: q = 10
                    elif (w & wr) and w != wr: q = 12
                elif w & (rd | wr): q = 12
            if k in 'vtp' and kind == 'm' and (w & (rd | cc)): q = max(q, 2)
            if k == 't' and kind in 'vpm' and (w & rd): q = max(q, 1)
            if k in 'vtp' and kind == 'p' and (w & rd): q = max(q, 2)
            if k == 's' and kind in 'vtp' and (r & wr): q = max(q, 2)
            if k == 'M' and kind == 'l': q = max(q, 1)
            need = max(need, q - d)
        if need > 0: s.nop(need)
        s.l.append("    " + x); s.hist.append((kind, wr, rd, cc))
        if kind == 'd': s.nl += 1; return s.nl
        if kind in 'sl': s.nv += 1; return s.nv
    def need_lds(s, i):
        if i > s.ldone:
            n = min(s.nl - i, 15); s(f"s_waitcnt lgkmcnt({n})"); s.ldone = s.nl - n
    def need_vm(s, i):
        n = s.nv - i; assert n >= 0
        s(f"s_waitcnt vmcnt({min(n, 63)})")

def build(T=8.0, nwg=256, nld='nt', nst='nt', stamp=False, drop=(), wq=1.0, wp=0.8, sm0=2, nheads=4, prof=False, hit=False, dstep=2.5, kvp=2, maxlead=140, qlead=30, qcp=1, dbg=False):
    e = Em()
    AG = {(0,3):0, (0,5):1, (1,3):2, (1,5):3, (2,3):4, (2,5):5, (2,4):6}
    vmap = {}; n = 0
    for x in range(3):
        for d in range(6):
            if (x, d) not in AG: vmap[(x, d)] = 16 * n; n += 1
    def Oreg(x, d): return ('a', 144 + 16 * AG[(x, d)]) if (x, d) in AG else ('v', vmap[(x, d)])
    def Or(x, d): f, b = Oreg(x, d); return f"{f}[{b}:{b+15}]"
    Qr = lambda x, b: f"a[{48*x+4*b}:{48*x+4*b+3}]"
    S = lambda x: 176 + 16 * x
    Fr = lambda i: 224 + 4 * (i % 4)
    vKr, vVr, vKd, vVd, vM, vL, t0, t1 = 240, 244, 246, 247, 248, 251, 254, 255
    r = lambda a, n: f"v[{a}:{a+n-1}]"
    SRD = {('Q',0):8, ('K',0):12, ('V',0):16, ('Q',1):64, ('K',1):68, ('V',1):72}
    sO = 20
    sW, sIt, sH0, sH1, sHp, sC, sLw, sT, sA, sB, sStg, sOw = 24, 25, 26, 27, 28, 29, 30, 31, 32, 33, 34, 35
    sQw, sP0 = 36, 38
    srd = lambda a: f"s[{a}:{a+3}]"
    NL = (" " + nld) if nld else ""; NS = (" " + nst) if nst else ""

    e(f"s_cmp_ge_u32 s2, {nwg}"); e("s_cbranch_scc1 L_end")
    if stamp:
        e("s_memtime s[48:49]"); e("s_memrealtime s[50:51]"); e(f"s_load_dwordx2 s[52:53], s[0:1], {32 if stamp == 2 else 40}")
    e("s_load_dwordx4 s[40:43], s[0:1], 0"); e("s_load_dwordx4 s[44:47], s[0:1], 16")
    a, b, c, d, L = 1, 2, 3, 4, 5
    e(f"v_lshrrev_b32 v{a}, 6, v0"); e(f"v_and_b32 v{L}, 63, v0"); e(f"v_readfirstlane_b32 s{sW}, v{a}")
    e(f"s_mov_b32 s{sC}, {f2u(math.log2(math.e) / math.sqrt(192.0)):#x}"); e(f"s_mov_b32 s{sT}, {f2u(T):#x}")
    e(f"s_mov_b32 s{sIt}, 0")
    e(f"v_bfe_u32 v{a}, v{L}, 3, 2"); e(f"v_mul_u32_u24 v{a}, 3072, v{a}")
    e(f"v_and_b32 v{b}, 7, v{L}"); e(f"v_lshl_add_u32 v{a}, v{b}, 7, v{a}")
    e(f"v_bfe_u32 v{b}, v{L}, 1, 3"); e(f"v_lshrrev_b32 v{c}, 5, v{L}"); e(f"v_xor_b32 v{b}, v{b}, v{c}")
    for i in range(4):
        e(f"v_xor_b32 v{d}, {2*i}, v{b}"); e(f"v_lshl_add_u32 v{vKr+i}, v{d}, 4, v{a}")
    e(f"v_bfe_u32 v{a}, v{L}, 2, 2"); e(f"v_lshl_add_u32 v{a}, v{c}, 2, v{a}"); e(f"v_lshlrev_b32 v{a}, 7, v{a}")
    e(f"v_and_b32 v{b}, 1, v{L}"); e(f"v_lshl_add_u32 v{a}, v{b}, 3, v{a}")
    e(f"v_bfe_u32 v{b}, v{L}, 1, 1"); e(f"v_bfe_u32 v{d}, v{L}, 4, 1"); e(f"v_lshl_add_u32 v{b}, v{d}, 1, v{b}")
    e(f"v_bfe_u32 v{d}, v{L}, 3, 1"); e(f"v_lshl_add_u32 v{b}, v{d}, 2, v{b}")
    for i in range(2):
        e(f"v_xor_b32 v{d}, {4*i}, v{b}"); e(f"v_lshl_add_u32 v{vVr+i}, v{d}, 4, v{a}")
    e(f"s_mul_i32 s{sLw}, s{sW}, 3072"); e(f"s_lshl_b32 s{sA}, s{sW}, 2")
    e(f"v_lshrrev_b32 v{a}, 3, v{L}"); e(f"v_mul_u32_u24 v{a}, 384, v{a}"); e(f"v_add_u32 v{a}, s{sLw}, v{a}")
    e(f"v_and_b32 v{b}, 7, v{L}"); e(f"v_lshrrev_b32 v{c}, 4, v{L}")
    e(f"v_add_u32 v{d}, s{sA}, v{c}"); e(f"v_and_b32 v{d}, 7, v{d}"); e(f"v_xor_b32 v{d}, v{d}, v{b}")
    e(f"v_lshl_add_u32 v{vKd}, v{d}, 4, v{a}")
    e(f"v_and_b32 v{d}, 1, v{c}"); e(f"v_lshlrev_b32 v{d}, 2, v{d}"); e(f"v_xor_b32 v{d}, v{d}, v{b}")
    e(f"v_lshl_add_u32 v{vVd}, v{d}, 4, v{a}")
    e(f"s_mul_i32 s{sQw}, s{sW}, {TILEB}")
    e(f"s_and_b32 s{sA}, s{sW}, 1"); e(f"s_lshl_b32 s{sA}, s{sA}, 6")
    e(f"s_add_u32 s{sP0}, s{sQw}, s{sA}"); e(f"s_xor_b32 s{sP0+1}, s{sP0}, 64")
    e(f"s_mul_i32 s{sOw}, s{sW}, {3*TILEB - 3072}")
    if hit: e("s_and_b32 s2, s2, 7")
    e(f"s_mul_i32 s{sH1}, s2, {HEADB}"); e(f"s_mov_b32 s{sH0}, s{sH1}"); e(f"s_add_u32 s{sHp}, s{sH1}, s{sOw}")
    e("s_waitcnt lgkmcnt(0)")
    for (dd, src, nr) in ((8,40,0), (12,42,0), (16,44,0), (64,40,TOTB), (68,42,TOTB), (72,44,TOTB), (sO,46,0)):
        e(f"s_mov_b32 s{dd}, s{src}"); e(f"s_and_b32 s{dd+1}, s{src+1}, 0xffff"); e(f"s_mov_b32 s{dd+2}, {nr}"); e(f"s_mov_b32 s{dd+3}, 0x20000")

    if prof:
        e("s_mov_b32 s54, 0x400000"); e("s_mov_b32 s55, 0x20000"); e("s_and_b32 s53, s53, 0xffff")
        e(f"s_lshl_b32 s82, s2, 2"); e(f"s_add_u32 s82, s82, s{sW}"); e("s_lshl_b32 s82, s82, 11"); e("s_add_u32 s82, s82, 0x100000")

    X0, Y0, R0 = 0, 4, 8
    bgap = lambda bn: (6 * (bn // 2) + (2 if bn % 2 == 0 else 5)) * 12 + 7
    kv = []
    for j in range(12):
        kv.append(('V', j, 2*j, 2*j+3)); kv.append(('K', j+1, 2*j+1, 2*j+3))
    extras = {('V',5): X0, ('K',6): X0+1, ('V',6): X0+2, ('K',7): X0+3}
    slot = {}; rot = [t for t in kv if (t[0], t[1]) not in extras]
    sched = []
    info = {}
    xfree = [b for b in range(24) if bgap(b) > (int(8 + 5 * dstep) + 1) * 12][0]
    last = -10**9
    for t in kv:
        key = (t[0], t[1])
        if key in extras: slot[key] = extras[key]; fr = xfree
        else:
            n = rot.index(t); slot[key] = R0 + n % 5
            p = rot[n - 5]; fr = p[3] - (24 if n < 5 else 0)
        g = max(bgap(fr) if fr >= 0 else bgap(fr + 24) - 864, last + kvp, bgap(t[2]) - maxlead)
        for seg in range(3): sched.append((g + seg * kvp, key, seg)); last = g + seg * kvp
        assert last < bgap(t[2]) - 24, (t, last)
        info[key] = t[2]
    slot[('K', 0)] = slot[('K', 12)]
    yfree = [b for b in range(24) if bgap(b) > (int(9 + 11 * dstep) + 1) * 12][0]
    for (x, base, rb, g0, g1) in ((0, X0, 22, bgap(15), bgap(22) - qlead), (1, Y0, 23, max(bgap(yfree), bgap(15) + 6), bgap(23) - qlead), (2, X0, 24, bgap(23), bgap(23) + 12 * qcp)):
        for w in range(4):
            key = ('Q', 3*w+x); slot[key] = base + w; info[key] = rb
            for seg in range(3): sched.append((g0 + (g1 - g0) * (3*w+seg) // 12, key, seg))
    if dbg:
        for k in info: print(k, slot[k], [g for g, kk, s_ in sched if kk == k], bgap(info[k]))
    byg = {}
    for (g, key, seg) in sched:
        rel = 1 if (key[0] == 'Q' or key == ('K', 12)) else 0
        if g < 0: g += 864; rel += 1
        if g >= 864: g -= 864; rel -= 1
        byg.setdefault(g, []).append((key, seg, rel))
    st = dict(kb=0, vb=0, qd=None, sb=None)
    vmid = {}
    def dma(key, seg, rel, part=3):
        k, i = key; i %= 12
        if part & 1:
            e(f"s_add_u32 m0, s{sLw}, {slot[key]*TILEB + seg*896}")
            if st['sb'] != (key, rel, st.get('gen')): e(f"s_add_u32 s{sB}, s{sH1 if rel else sH0}, {i*TILEB}"); st['sb'] = (key, rel, st.get('gen'))
        if not part & 2: return
        if 'dma' in drop: e("s_nop 0"); vmid[key] = e.nv; return
        vmid[key] = e(f"buffer_load_dwordx4 v{vVd if k == 'V' else vKd}, {srd(SRD[(k, rel)])}, s{sB} offen offset:{seg*128}{NL} lds")
    def rebase(which, s):
        key, reg, n = ('kb', vKr, 4) if which == 'K' else ('vb', vVr, 2)
        dlt = (s - st[key]) * TILEB
        if dlt:
            for i in range(n): e(f"v_add_u32 v{reg+i}, {dlt & 0xffffffff:#x}, v{reg+i}")
        st[key] = s
    def kread(dst, s, b):
        if not (0 <= s - st['kb'] <= 5): rebase('K', s)
        return e(f"ds_read_b128 {dst}, v{vKr+(b&3)} offset:{(s-st['kb'])*TILEB + (b>>2)*1024}")
    def vread(i, s):
        ks, d = divmod(i, 6)
        if not (0 <= s - st['vb'] <= 4): rebase('V', s)
        for hf in range(2):
            x = e(f"ds_read_b64_tr_b16 {r(Fr(i)+2*hf,2)}, v{vVr+(d&1)} offset:{(s-st['vb'])*TILEB + (2*ks+hf)*3072 + (d>>1)*1024}")
        return x
    slow = []
    def softmax(x, first, tag):
        s = S(x); o = []
        o.append(f"v_max3_f32 v{t0}, v{s}, v{s+1}, v{s+2}")
        for i in range(3, 15, 2): o.append(f"v_max3_f32 v{t0}, v{t0}, v{s+i}, v{s+i+1}")
        o.append(f"v_max_f32 v{t0}, v{t0}, v{s+15}")
        if first:
            o += [f"v_mov_b32 v{t1}, v{t0}", f"v_permlane32_swap_b32 v{t0}, v{t1}", f"v_max_f32 v{t0}, v{t0}, v{t1}", f"v_mul_f32 v{vM+x}, s{sC}, v{t0}"]
        else:
            o += [f"v_fma_f32 v{t1}, v{t0}, s{sC}, -v{vM+x}", f"v_cmp_lt_f32 vcc, s{sT}, v{t1}", ('slow', x, tag)]
        def fin(j):
            q = []
            if first and j == 0: q.append(f"v_add_f32 v{vL+x}, v{s}, v{s+1}")
            else: q += [f"v_add_f32 v{vL+x}, v{vL+x}, v{s+2*j}", f"v_add_f32 v{vL+x}, v{vL+x}, v{s+2*j+1}"]
            q.append(f"v_cvt_pk_bf16_f32 v{s+j}, v{s+2*j}, v{s+2*j+1}")
            return q
        for j in range(8):
            o += [f"v_fma_f32 v{s+2*j}, v{s+2*j}, s{sC}, -v{vM+x}", f"v_fma_f32 v{s+2*j+1}, v{s+2*j+1}, s{sC}, -v{vM+x}",
                  f"v_exp_f32 v{s+2*j}, v{s+2*j}", f"v_exp_f32 v{s+2*j+1}, v{s+2*j+1}"]
            if j: o += fin(j - 1)
        o += fin(7)
        return o

    def epilogue(x):
        B0 = Oreg(x, 0)[1]; Tm = Oreg(x, 1)[1]
        inv, aW = B0+8, B0+9
        l = vL + x
        def block(d, iv):
            f, b = Oreg(x, d); q = []
            if f == 'a':
                for i in range(16): q.append(f"v_accvgpr_read_b32 v{Tm+i}, a{b+i}")
                b = Tm
            for i in range(16): q.append(f"v_mul_f32 v{b+i}, v{b+i}, v{iv}")
            for i in range(8): q.append(f"v_cvt_pk_bf16_f32 v{b+i}, v{b+2*i}, v{b+2*i+1}")
            for p in range(2):
                q += [f"v_permlane32_swap_b32 v{b+4*p}, v{b+4*p+2}", f"v_permlane32_swap_b32 v{b+4*p+1}, v{b+4*p+3}"]
            return q, [f"ds_write_b128 v{aW+2*(d&1)+p}, {r(b+4*p,4)} offset:{(d>>1)*1024}" for p in range(2)]
        q0, w0 = block(0, l)
        p1 = [f"v_mov_b32 v{t1}, v{l}", f"v_permlane32_swap_b32 v{l}, v{t1}", f"v_add_f32 v{l}, v{l}, v{t1}", f"v_rcp_f32 v{l}, v{l}"] + q0 + [f"v_mov_b32 v{inv}, v{l}"]
        q1, w1 = block(1, inv)
        p2 = [('aw', aW, X0 if x == 1 else Y0)] + q1
        p3 = w0 + w1
        for d in range(2, 6):
            q, w = block(d, inv); p3 += q + w
        return p1, p2, p3
    rbid = {}
    def emit(it, G=None):
        if isinstance(it, str): e(it); return
        if it[0] == 'slow':
            e(f"s_cbranch_vccnz L_slow{it[2]}"); e.lab(f"L_ret{it[2]}"); slow.append((it[1], it[2]))
        elif it[0] == 'aw':
            e(f"s_add_u32 s{sA}, s{sQw}, {((it[2] - st['kb']) * TILEB) & 0xffffffff:#x}")
            for b in range(4): e(f"v_add_u32 v{it[1]+b}, s{sA}, v{vKr+b}")
        elif it[0] == 'rd':
            _, x, k, rp, D = it
            e(f"v_mbcnt_lo_u32_b32 v{D}, -1, 0"); e(f"s_add_u32 s{sA}, s{sP0+rp}, {(X0 if x == 1 else Y0)*TILEB}")
            e(f"v_mbcnt_hi_u32_b32 v{D}, -1, v{D}"); e(f"v_lshlrev_b32 v{D}, 4, v{D}"); e(f"v_xor_b32 v{D}, s{sA}, v{D}")
            e(f"ds_read_b128 {r(D+4,4)}, v{D} offset:{((rp+2)*3+k)*1024}")
            rbid[it[1:4]] = e(f"ds_read_b128 {r(D,4)}, v{D} offset:{(rp*3+k)*1024}")
        elif it[0] == 'st':
            _, x, k, rp, D, j = it
            e(f"s_add_u32 s{sA}, s{sHp}, {x*TILEB + (rp+2*j)*3072}"); e.need_lds(rbid[it[1:4]])
            if 'st' in drop: e("s_nop 0")
            else: e(f"buffer_store_dwordx4 {r(D+4*j,4)}, v{vKd}, {srd(sO)}, s{sA} offen offset:{k*128}{NS}")
        elif it[0] == 'q': qread(it[1], it[2], it[3])
    cost = lambda it: 2.0 if isinstance(it, str) and it.startswith('v_exp') else 1.0
    def split(items, g0, g1):
        tot = sum(cost(i) for i in items)
        w = [(wq if (g // 12) % 2 == 0 else wp) for g in range(g0, g1)]
        W = sum(w); acc = 0; k = 0; lim = 0
        for gi, g in enumerate(range(g0, g1)):
            lim += w[gi] / W * tot
            while k < len(items) and (acc + cost(items[k]) / 2 <= lim or gi == g1 - g0 - 1):
                fill[g].append(items[k]); acc += cost(items[k]); k += 1
    qid = {}; fid = {}
    def group_desc(G):
        G %= 72
        P, g = divmod(G, 6)
        if g % 2 == 0: return ('K', g // 2, P)
        if g == 5: return ('V', 0, P)
        return ('V', {1: 1, 3: 2}[g], (P - 1) % 12)
    def fragread(G, i):
        ty, x, t = group_desc(G)
        if 'fr' in drop and st.get('gen') and (G % 6 or G >= 72): fid[(G % 72, i)] = 0; return
        if ty == 'K': fid[(G % 72, i)] = kread(r(Fr(i), 4), slot[('K', t)], i)
        else: fid[(G % 72, i)] = vread(i, slot[('V', t)])
    def qread(x, b, tmp):
        dl = (slot[('Q', x)] - st['kb']) * TILEB
        if b == 0 or st['qd'] != dl:
            e(f"s_add_u32 s37, s{sQw}, {dl & 0xffffffff:#x}"); st['qd'] = dl
        e(f"v_add_u32 v{tmp+(b&1)}, s37, v{vKr+(b&3)}")
        qid[x] = e(f"ds_read_b128 {Qr(x,b)}, v{tmp+(b&1)} offset:{(b>>2)*1024}")
    fill = [[] for _ in range(73 * 12)]
    smark = set()
    for G in range(72):
        ty, x, t = group_desc(G)
        if ty == 'K' and 'sm' not in drop:
            o = softmax(x, t == 0, f"{G}"); split(o, (G + 1) * 12 + sm0, (G + 3) * 12)
    for i in range(12): fill[i] = fill[864 + i] + fill[i]
    nsm = [len(f) for f in fill]
    FREE = {0: 1, 1: 2, 2: 2, 3: 0, 4: 0, 5: 0}
    def event(x, n, G, g):
        k, rp = divmod(n, 2); D = S(FREE[G % 6]) + 8
        fill[G*12+g].append(('rd', x, k, rp, D))
        fill[G*12+g+3].append(('st', x, k, rp, D, 0)); fill[G*12+g+4].append(('st', x, k, rp, D, 1))
    if 'ep' not in drop:
        for x in range(3):
            p1, p2, p3 = epilogue(x); g0 = 24 * x
            split(p1, g0 + 1, g0 + 12); split(p2, g0 + 12, g0 + 24); split(p3, g0 + 24, g0 + 58)
        for n in range(6): event(0, n, 3 + n // 2 + (1 if n >= 4 and False else 0), 6 * (n % 2) + (1 if n == 4 else 0))
        for n in range(12): event(1 + n // 6, n % 6, int(9 + n * dstep - (1 if n < 6 else 0)), 3)
    for (x, G) in ((2, 3), (0, 69), (1, 1)):
        split([('q', x, b, S(group_desc(G)[1]) + 14) for b in range(12)], G * 12, G * 12 + 12)
    GH = int(9 + 11 * dstep) + 1
    def mf(d, a_, b_, c):
        if 'm16' not in drop: e(f"v_mfma_f32_32x32x16_bf16 {d}, {a_}, {b_}, {c}"); return
        f, lo = d[0], int(d[2:d.index(':')])
        for k in range(2):
            dd = f"{f}[{lo+4*k+8*(st['alt']&1)}:{lo+4*k+3+8*(st['alt']&1)}]"
            e.raw(f"    v_mfma_f32_16x16x32_bf16 {dd}, {a_}, {b_}, {'0' if c == '0' else dd}")
        st['alt'] += 1
    st['alt'] = 0
    def body(dry):
        for G in range(72):
            ty, x, t = group_desc(G)
            P, g = divmod(G, 6)
            if G == 6:
                e(f"s_cmp_eq_u32 s{sIt}, {nheads}"); e("s_cbranch_scc1 L_tail")
                st['tailstate'] = (e.nl, e.ldone, dict(rbid), st['kb'])
            if G == GH:
                e(f"s_add_u32 s{sHp}, s{sH0}, s{sOw}"); e(f"s_mov_b32 s{sO+2}, {TOTB}")
            for i in range(12):
                gi = G * 12 + i
                if ty == 'K' and i == 0 and t == 0: e.need_lds(qid[x])
                e.need_lds(fid[(G, i)])
                if ty == 'K':
                    mf(r(S(x),16), r(Fr(i),4), Qr(x,i), '0' if i == 0 else r(S(x),16))
                else:
                    ks, d = divmod(i, 6)
                    mf(Or(x,d), r(Fr(i),4), Qr(x,i) if 'sm' in drop else r(S(x)+4*ks,4), '0' if (t == 0 and ks == 0) else Or(x,d))
                if i == 7 and g in (2, 5):
                    bn = 2 * P + (0 if g == 2 else 1)
                    req = [k for k, rb in info.items() if rb % 24 == bn]
                    if prof: e("s_memtime s[76:77]"); e("s_waitcnt lgkmcnt(0)")
                    if req and not dry: e.need_vm(max(vmid[k] for k in req))
                    if prof: e("s_memtime s[80:81]"); e("s_waitcnt lgkmcnt(0)")
                    e("s_barrier")
                    if prof:
                        tp = S(2 if g == 2 else 1) + 8
                        e("s_memtime s[78:79]"); e("s_waitcnt lgkmcnt(0)")
                        e(f"v_mov_b32 v{tp}, s76"); e(f"v_mov_b32 v{tp+1}, s80"); e(f"v_mov_b32 v{tp+2}, s78"); e(f"v_mov_b32 v{tp+3}, s82")
                        e(f"buffer_store_dwordx3 v[{tp}:{tp+2}], v{tp+3}, s[52:55], 0 offen"); e.nv -= 1
                        e("s_add_u32 s82, s82, 16")
                dl = byg.get(gi, [])
                if dl: dma(*dl[0], 1)
                if i < 8: fragread(G, i + 4)
                else: fragread(G + 1, i - 8)
                for it in fill[gi]: emit(it)
                for k_, d_ in enumerate(dl): dma(*d_, 3 if k_ else 2)
        rebase('K', kb0); rebase('V', vb0)
    kb0, vb0 = slot[('K', 0)], slot[('V', 11)]
    nxt = [(g, d) for g in sorted(byg) for d in byg[g] if d[2] == 1]
    late = [g for g in sorted(byg) for d in byg[g] if d[2] == 0]
    oldest = min(g for g, d in nxt if info[d[0]] % 24 < 20)
    assert max(late) < oldest, (max(late), oldest)
    ph1 = [d for g, d in nxt if g < bgap(23)]
    ph1.sort(key=lambda d: 0 if d[0] in (('Q',0),('Q',3),('Q',6),('Q',9),('K',12)) else (1 if d[0][0] == 'Q' else 2))
    for d in ph1: dma(*d)
    e.need_vm(max(vmid[d[0]] for d in ph1 if d[0][0] == 'Q' or d[0] == ('K', 12))); e("s_barrier")
    for b in range(12): qread(0, b, 176)
    rebase('K', kb0); rebase('V', vb0)
    for i in range(4): fragread(0, i)
    e("s_waitcnt lgkmcnt(0)"); e("s_barrier")
    for g, d in nxt:
        if g >= bgap(23): dma(*d)
    e.lab("L_loop")
    st['gen'] = 1
    e(f"s_mov_b32 s{sH0}, s{sH1}")
    for k in (8, 12, 16): e(f"s_mov_b32 s{k+2}, s{64+2}")
    e(f"s_add_u32 s{sH1}, s{sH1}, {0 if hit else nwg*HEADB}")
    e(f"s_cmp_lt_u32 s{sIt}, {nheads-1}")
    e(f"s_cselect_b32 s32, {TOTB}, 0"); e(f"s_cselect_b32 s{sH1}, s{sH1}, s{sH0}")
    for k in (64, 68, 72): e(f"s_mov_b32 s{k+2}, s32")
    e.nop(4)
    e.nl += 100
    for i in range(4): e.nl += 1; fid[(0, i)] = e.nl
    e.ldone = e.nl - 4
    body(False)
    e(f"s_add_u32 s{sIt}, s{sIt}, 1"); e("s_branch L_loop")
    e.lab("L_tail")
    e.nl, e.ldone, rb_, st['kb'] = st['tailstate']; rbid.update(rb_); e.hist = []
    e.nop(12)
    for gi in range(72, 864):
        for it in fill[gi][nsm[gi]:]:
            if not (isinstance(it, tuple) and it[0] == 'q'): emit(it)
    if stamp:
        e("s_waitcnt vmcnt(0)")
        e("s_memtime s[56:57]"); e("s_memrealtime s[58:59]"); e("s_waitcnt lgkmcnt(0)")
        e("s_sub_u32 s56, s56, s48"); e("s_sub_u32 s57, s58, s50"); e(f"s_mov_b32 s54, {64 if stamp == 2 else 0x100000}"); e("s_mov_b32 s55, 0x20000"); e("s_and_b32 s53, s53, 0xffff")
        e("v_mov_b32 v0, s56"); e("v_mov_b32 v1, s57"); e("v_mov_b32 v2, s50"); e("v_mov_b32 v3, 0")
        e(f"s_lshl_b32 s62, s2, 2"); e(f"s_add_u32 s62, s62, s{sW}"); e(f"s_lshl_b32 s62, s62, {2 if stamp == 2 else 5}"); e("v_mov_b32 v6, s62"); e("s_mov_b64 exec, 1")
        e("buffer_store_dwordx4 v[0:3], v6, s[52:55], 0 offen") if stamp != 2 else (e(f"s_cmp_eq_u32 s{sW}, 0"), e("s_cbranch_scc0 L_end"), e("buffer_store_dwordx4 v[0:3], v6, s[52:55], 0 offen"))
    e.lab("L_end"); e("s_endpgm")
    for (x, tag) in slow:
        e.lab(f"L_slow{tag}"); e.hist = []
        e.nop(2)
        for s_ in (f"v_mov_b32 v{t1}, v{t0}", f"v_permlane32_swap_b32 v{t0}, v{t1}", f"v_max_f32 v{t0}, v{t0}, v{t1}", f"v_mul_f32 v{t0}, s{sC}, v{t0}",
                   f"v_max_f32 v{t0}, v{t0}, v{vM+x}", f"v_sub_f32 v{t1}, v{vM+x}, v{t0}", f"v_exp_f32 v{t1}, v{t1}", f"v_mov_b32 v{vM+x}, v{t0}"): e(s_)
        e(f"v_mul_f32 v{vL+x}, v{vL+x}, v{t1}")
        for d in range(6):
            f, b = Oreg(x, d)
            for i in range(16):
                if f == 'v': e(f"v_mul_f32 v{b+i}, v{b+i}, v{t1}")
                else:
                    e(f"v_accvgpr_read_b32 v{t0}, a{b+i}"); e(f"v_mul_f32 v{t0}, v{t0}, v{t1}"); e(f"v_accvgpr_write_b32 a{b+i}, v{t0}")
        e.nop(2)
        e(f"s_branch L_ret{tag}")
    hdr = f"""; MHA forward, B*H=1024 heads, S=384, D=192, bf16.  Generated by gen/gen3.py
; @launch grid=({nwg},1,1) block=(256,1,1) lds={LDSB}
.amdgcn_target "amdgcn-amd-amdhsa--gfx950"
.text
.globl {NAME}_kernel
.p2align 8
.type {NAME}_kernel,@function
{NAME}_kernel:
"""
    ftr = f"""
.section .rodata,"a"
.p2align 6
.amdhsa_kernel {NAME}_kernel
  .amdhsa_next_free_vgpr 512
  .amdhsa_next_free_sgpr 96
  .amdhsa_accum_offset 256
  .amdhsa_group_segment_fixed_size 0
  .amdhsa_kernarg_size 48
  .amdhsa_user_sgpr_count 2
  .amdhsa_user_sgpr_kernarg_segment_ptr 1
  .amdhsa_system_sgpr_workgroup_id_x 1
.end_amdhsa_kernel
"""
    return hdr + "\n".join(e.l) + ftr

if __name__ == "__main__":
    kw = {}
    for a in sys.argv[2:]:
        k, v = a.split("="); kw[k] = eval(v)
    open(sys.argv[1], "w").write(build(**kw))
```

```python
import sys, math, struct, re
NAME = "standalone__mha_softmax__near_ridge"
HEADB = 384 * 192 * 2
TILEB = 12288
TOTB = 1024 * HEADB
NSLOT = 13
LDSB = NSLOT * TILEB
def f2u(x): return struct.unpack("<I", struct.pack("<f", x))[0]

def regs(tok):
    tok = tok.strip().lstrip('-')
    m = re.match(r'^([va])\[(\d+):(\d+)\]$', tok)
    if m: return {(m.group(1), i) for i in range(int(m.group(2)), int(m.group(3)) + 1)}
    m = re.match(r'^([va])(\d+)$', tok)
    if m: return {(m.group(1), int(m.group(2)))}
    return set()

class Em:
    def __init__(s):
        s.l = []; s.hist = []
        s.nl = 0; s.ldone = 0
        s.nv = 0
    def raw(s, x): s.l.append(x)
    def lab(s, x): s.l.append(x + ":")
    def nop(s, n):
        while n > 0:
            k = min(n, 16); s.l.append(f"    s_nop {k-1}"); s.hist += [('o', set(), set(), set())] * k; n -= k
    def __call__(s, x):
        op = x.split()[0]
        ops = [o.strip() for o in x[len(op):].split(';')[0].split(',')]
        ops = [o.split()[0] if o else o for o in ops]
        wr, rd, cc = set(), set(), set()
        if op.startswith('v_mfma'):
            kind = 'm'; wr = regs(ops[0]); rd = regs(ops[1]) | regs(ops[2]); cc = regs(ops[3])
        elif op.startswith('v_permlane'):
            kind = 'p'; wr = regs(ops[0]) | regs(ops[1]); rd = set(wr)
        elif op.startswith('v_cmp'):
            kind = 'v'; rd = set().union(*[regs(o) for o in ops[1:]])
        elif op.startswith('v_'):
            kind = 't' if op in ('v_exp_f32', 'v_rcp_f32') else 'v'
            wr = regs(ops[0]); rd = set().union(*[regs(o) for o in ops[1:]])
        elif op.startswith('ds_read'):
            kind = 'd'; wr = regs(ops[0]); rd = regs(ops[1])
        elif op.startswith('ds_write'):
            kind = 'd'; rd = regs(ops[0]) | regs(ops[1])
        elif op.startswith('buffer_store'):
            kind = 's'; rd = regs(ops[0]) | regs(ops[1])
        elif op.startswith('buffer_load'):
            kind = 'l'; rd = regs(ops[0])
        else:
            kind = 'M' if ops[0] == 'm0' else 'o'
        need = 0
        for d, (k, w, r, c) in enumerate(reversed(s.hist[-20:])):
            q = 0
            if k == 'm':
                if kind == 'm':
                    if w & rd: q = 12
                    elif (w & cc) and w != cc: q = 10
                    elif (w & wr) and w != wr: q = 12
                elif w & (rd | wr): q = 12
            if k in 'vtp' and kind == 'm' and (w & (rd | cc)): q = max(q, 2)
            if k == 't' and kind in 'vpm' and (w & rd): q = max(q, 1)
            if k in 'vtp' and kind == 'p' and (w & rd): q = max(q, 2)
            if k == 's' and kind in 'vtp' and (r & wr): q = max(q, 2)
            if k == 'M' and kind == 'l': q = max(q, 1)
            need = max(need, q - d)
        if need > 0: s.nop(need)
        s.l.append("    " + x); s.hist.append((kind, wr, rd, cc))
        if kind == 'd': s.nl += 1; return s.nl
        if kind in 'sl': s.nv += 1; return s.nv
    def need_lds(s, i):
        if i > s.ldone:
            n = min(s.nl - i, 15); s(f"s_waitcnt lgkmcnt({n})"); s.ldone = s.nl - n
    def need_vm(s, i):
        n = s.nv - i; assert n >= 0
        s(f"s_waitcnt vmcnt({min(n, 63)})")

def build(T=8.0, nwg=256, nld='nt', nst='nt', stamp=False, drop=(), wq=1.0, wp=0.8, sm0=2, nheads=4, prof=False, hit=False, dstep=2.5, kvp=2, maxlead=140, qlead=30, qcp=1, dbg=False, w2=True, smx=2, fewb=False, pk=False, bal=True, cd=3.0, var=True):
    e = Em()
    AG = {(0,3):0, (0,5):1, (1,3):2, (1,5):3, (2,3):4, (2,5):5, (2,4):6}
    vmap = {}; n = 0
    for x in range(3):
        for d in range(6):
            if (x, d) not in AG: vmap[(x, d)] = 16 * n; n += 1
    def Oreg(x, d): return ('a', 144 + 16 * AG[(x, d)]) if (x, d) in AG else ('v', vmap[(x, d)])
    def Or(x, d): f, b = Oreg(x, d); return f"{f}[{b}:{b+15}]"
    Qr = lambda x, b: f"a[{48*x+4*b}:{48*x+4*b+3}]"
    S = lambda x: 176 + 16 * x
    Fr = lambda i: 224 + 4 * (i % 4)
    vKr, vVr, vKd, vVd, vM, vL, t0, t1 = 240, 244, 246, 247, 248, 251, 254, 255
    r = lambda a, n: f"v[{a}:{a+n-1}]"
    SRD = {('Q',0):8, ('K',0):12, ('V',0):16, ('Q',1):64, ('K',1):68, ('V',1):72}
    sO = 20
    sW, sIt, sH0, sH1, sHp, sC, sLw, sT, sA, sB, sStg, sOw = 24, 25, 26, 27, 28, 29, 30, 31, 32, 33, 34, 35
    sQw, sP0 = 36, 38
    srd = lambda a: f"s[{a}:{a+3}]"
    NL = (" " + nld) if nld else ""; NS = (" " + nst) if nst else ""

    e(f"s_cmp_ge_u32 s2, {nwg}"); e("s_cbranch_scc1 L_end")
    if stamp:
        e("s_memtime s[48:49]"); e("s_memrealtime s[50:51]"); e(f"s_load_dwordx2 s[52:53], s[0:1], {32 if stamp == 2 else 40}")
    e("s_load_dwordx4 s[40:43], s[0:1], 0"); e("s_load_dwordx4 s[44:47], s[0:1], 16")
    a, b, c, d, L = 1, 2, 3, 4, 5
    e(f"v_lshrrev_b32 v{a}, 6, v0"); e(f"v_and_b32 v{L}, 63, v0"); e(f"v_readfirstlane_b32 s{sW}, v{a}")
    e(f"s_mov_b32 s{sC}, {f2u(math.log2(math.e) / math.sqrt(192.0)):#x}"); e(f"s_mov_b32 s{sT}, {f2u(T):#x}")
    e(f"s_mov_b32 s{sIt}, 0")
    e(f"v_bfe_u32 v{a}, v{L}, 3, 2"); e(f"v_mul_u32_u24 v{a}, 3072, v{a}")
    e(f"v_and_b32 v{b}, 7, v{L}"); e(f"v_lshl_add_u32 v{a}, v{b}, 7, v{a}")
    e(f"v_bfe_u32 v{b}, v{L}, 1, 3"); e(f"v_lshrrev_b32 v{c}, 5, v{L}"); e(f"v_xor_b32 v{b}, v{b}, v{c}")
    for i in range(4):
        e(f"v_xor_b32 v{d}, {2*i}, v{b}"); e(f"v_lshl_add_u32 v{vKr+i}, v{d}, 4, v{a}")
    e(f"v_bfe_u32 v{a}, v{L}, 2, 2"); e(f"v_lshl_add_u32 v{a}, v{c}, 2, v{a}"); e(f"v_lshlrev_b32 v{a}, 7, v{a}")
    e(f"v_and_b32 v{b}, 1, v{L}"); e(f"v_lshl_add_u32 v{a}, v{b}, 3, v{a}")
    e(f"v_bfe_u32 v{b}, v{L}, 1, 1"); e(f"v_bfe_u32 v{d}, v{L}, 4, 1"); e(f"v_lshl_add_u32 v{b}, v{d}, 1, v{b}")
    e(f"v_bfe_u32 v{d}, v{L}, 3, 1"); e(f"v_lshl_add_u32 v{b}, v{d}, 2, v{b}")
    for i in range(2):
        e(f"v_xor_b32 v{d}, {4*i}, v{b}"); e(f"v_lshl_add_u32 v{vVr+i}, v{d}, 4, v{a}")
    e(f"s_mul_i32 s{sLw}, s{sW}, 3072"); e(f"s_lshl_b32 s{sA}, s{sW}, 2")
    e(f"v_lshrrev_b32 v{a}, 3, v{L}"); e(f"v_mul_u32_u24 v{a}, 384, v{a}"); e(f"v_add_u32 v{a}, s{sLw}, v{a}")
    e(f"v_and_b32 v{b}, 7, v{L}"); e(f"v_lshrrev_b32 v{c}, 4, v{L}")
    e(f"v_add_u32 v{d}, s{sA}, v{c}"); e(f"v_and_b32 v{d}, 7, v{d}"); e(f"v_xor_b32 v{d}, v{d}, v{b}")
    e(f"v_lshl_add_u32 v{vKd}, v{d}, 4, v{a}")
    e(f"v_and_b32 v{d}, 1, v{c}"); e(f"v_lshlrev_b32 v{d}, 2, v{d}"); e(f"v_xor_b32 v{d}, v{d}, v{b}")
    e(f"v_lshl_add_u32 v{vVd}, v{d}, 4, v{a}")
    e(f"s_mul_i32 s{sQw}, s{sW}, {TILEB}")
    e(f"s_and_b32 s{sA}, s{sW}, 1"); e(f"s_lshl_b32 s{sA}, s{sA}, 6")
    e(f"s_add_u32 s{sP0}, s{sQw}, s{sA}"); e(f"s_xor_b32 s{sP0+1}, s{sP0}, 64")
    e(f"s_mul_i32 s{sOw}, s{sW}, {3*TILEB - 3072}")
    if hit: e("s_and_b32 s2, s2, 7")
    e(f"s_mul_i32 s{sH1}, s2, {HEADB}"); e(f"s_mov_b32 s{sH0}, s{sH1}"); e(f"s_add_u32 s{sHp}, s{sH1}, s{sOw}")
    e("s_waitcnt lgkmcnt(0)")
    for (dd, src, nr) in ((8,40,0), (12,42,0), (16,44,0), (64,40,TOTB), (68,42,TOTB), (72,44,TOTB), (sO,46,0)):
        e(f"s_mov_b32 s{dd}, s{src}"); e(f"s_and_b32 s{dd+1}, s{src+1}, 0xffff"); e(f"s_mov_b32 s{dd+2}, {nr}"); e(f"s_mov_b32 s{dd+3}, 0x20000")

    if prof:
        e("s_mov_b32 s54, 0x400000"); e("s_mov_b32 s55, 0x20000"); e("s_and_b32 s53, s53, 0xffff")
        e(f"s_lshl_b32 s82, s2, 2"); e(f"s_add_u32 s82, s82, s{sW}"); e("s_lshl_b32 s82, s82, 11"); e("s_add_u32 s82, s82, 0x100000")

    X0, Y0, R0 = 0, 4, 8
    bgap = lambda bn: (6 * (bn // 2) + (2 if bn % 2 == 0 else 5)) * 12 + 7
    kv = []
    for j in range(12):
        kv.append(('V', j, 2*j - (1 if (fewb and 0 < j < 11) else 0), 2*j+3)); kv.append(('K', j+1, 2*j+1, 2*j+3))
    extras = {('V',5): X0, ('K',6): X0+1, ('V',6): X0+2, ('K',7): X0+3}
    slot = {}; rot = [t for t in kv if (t[0], t[1]) not in extras]
    sched = []
    info = {}
    xfree = [b for b in range(24) if (b % 2 or not fewb) and bgap(b) > (int(8 + 5 * dstep) + 1) * 12][0]
    last = -10**9
    for t in kv:
        key = (t[0], t[1])
        if key in extras: slot[key] = extras[key]; fr = xfree
        else:
            n = rot.index(t); slot[key] = R0 + n % 5
            p = rot[n - 5]; fr = p[3] - (24 if n < 5 else 0)
        g = max(bgap(fr) if fr >= 0 else bgap(fr + 24) - 864, last + kvp, bgap(t[2]) - maxlead)
        for seg in range(3): sched.append((g + seg * kvp, key, seg)); last = g + seg * kvp
        assert last < bgap(t[2]) - 24, (t, last)
        info[key] = t[2]
    slot[('K', 0)] = slot[('K', 12)]
    yfree = [b for b in range(24) if (b % 2 or not fewb) and bgap(b) > (int(9 + 11 * dstep) + 1) * 12][0]
    for (x, base, rb, g0, g1) in ((0, X0, 22, bgap(15), bgap(22) - qlead), (1, Y0, 23, max(bgap(yfree), bgap(15) + 6), bgap(23) - qlead), (2, X0, 24, bgap(23), bgap(23) + 12 * qcp)):
        for w in range(4):
            key = ('Q', 3*w+x); slot[key] = base + w; info[key] = rb
            for seg in range(3): sched.append((g0 + (g1 - g0) * (3*w+seg) // 12, key, seg))
    if dbg:
        for k in info: print(k, slot[k], [g for g, kk, s_ in sched if kk == k], bgap(info[k]))
    byg = {}
    for (g, key, seg) in sched:
        rel = 1 if (key[0] == 'Q' or key == ('K', 12)) else 0
        if g < 0: g += 864; rel += 1
        if g >= 864: g -= 864; rel -= 1
        byg.setdefault(g, []).append((key, seg, rel))
    st = dict(kb=0, vb=0, qd=None, sb=None)
    vmid = {}
    def dma(key, seg, rel, part=3):
        k, i = key; i %= 12
        if part & 1:
            e(f"s_add_u32 m0, s{sLw}, {slot[key]*TILEB + seg*896}")
            if st['sb'] != (key, rel, st.get('gen')): e(f"s_add_u32 s{sB}, s{sH1 if rel else sH0}, {i*TILEB}"); st['sb'] = (key, rel, st.get('gen'))
        if not part & 2: return
        if 'dma' in drop: e("s_nop 0"); vmid[key] = e.nv; return
        vmid[key] = e(f"buffer_load_dwordx4 v{vVd if k == 'V' else vKd}, {srd(SRD[(k, rel)])}, s{sB} offen offset:{seg*128}{NL} lds")
    def rebase(which, s):
        key, reg, n = ('kb', vKr, 4) if which == 'K' else ('vb', vVr, 2)
        dlt = (s - st[key]) * TILEB
        if dlt:
            for i in range(n): e(f"v_add_u32 v{reg+i}, {dlt & 0xffffffff:#x}, v{reg+i}")
        st[key] = s
    def kread(dst, s, b):
        if not (0 <= s - st['kb'] <= 5): rebase('K', s)
        return e(f"ds_read_b128 {dst}, v{vKr+(b&3)} offset:{(s-st['kb'])*TILEB + (b>>2)*1024}")
    def vread(i, s):
        ks, d = divmod(i, 6)
        if not (0 <= s - st['vb'] <= 4): rebase('V', s)
        for hf in range(2):
            x = e(f"ds_read_b64_tr_b16 {r(Fr(i)+2*hf,2)}, v{vVr+(d&1)} offset:{(s-st['vb'])*TILEB + (2*ks+hf)*3072 + (d>>1)*1024}")
        return x
    slow = []
    def softmax(x, first, tag):
        s = S(x); o = []
        o.append(f"v_max3_f32 v{t0}, v{s}, v{s+1}, v{s+2}")
        for i in range(3, 15, 2): o.append(f"v_max3_f32 v{t0}, v{t0}, v{s+i}, v{s+i+1}")
        o.append(f"v_max_f32 v{t0}, v{t0}, v{s+15}")
        if first:
            o += [f"v_mov_b32 v{t1}, v{t0}", f"v_permlane32_swap_b32 v{t0}, v{t1}", f"v_max_f32 v{t0}, v{t0}, v{t1}", f"v_mul_f32 v{vM+x}, s{sC}, v{t0}"]
        else:
            o += [f"v_fma_f32 v{t1}, v{t0}, s{sC}, -v{vM+x}", f"v_cmp_lt_f32 vcc, s{sT}, v{t1}", ('slow', x, tag)]
        def fin(j):
            q = []
            if first and j == 0: q.append(f"v_add_f32 v{vL+x}, v{s}, v{s+1}")
            else: q += [f"v_add_f32 v{vL+x}, v{vL+x}, v{s+2*j}", f"v_add_f32 v{vL+x}, v{vL+x}, v{s+2*j+1}"]
            q.append(f"v_cvt_pk_bf16_f32 v{s+j}, v{s+2*j}, v{s+2*j+1}")
            return q
        for j in range(8):
            o += [f"v_fma_f32 v{s+2*j}, v{s+2*j}, s{sC}, -v{vM+x}", f"v_fma_f32 v{s+2*j+1}, v{s+2*j+1}, s{sC}, -v{vM+x}",
                  f"v_exp_f32 v{s+2*j}, v{s+2*j}", f"v_exp_f32 v{s+2*j+1}, v{s+2*j+1}"]
            if j: o += fin(j - 1)
        o += fin(7)
        return o

    def epilogue(x):
        B0 = Oreg(x, 0)[1]; Tm = Oreg(x, 1)[1]
        inv, aW = B0+8, B0+9
        l = vL + x
        def block(d, iv):
            f, b = Oreg(x, d); q = []
            if f == 'a':
                for i in range(16): q.append(f"v_accvgpr_read_b32 v{Tm+i}, a{b+i}")
                b = Tm
            if pk and iv % 2 == 0:
                for i in range(0, 16, 2): q.append(f"v_pk_mul_f32 v[{b+i}:{b+i+1}], v[{b+i}:{b+i+1}], v[{iv}:{iv+1}] op_sel_hi:[1,0]")
            else:
                for i in range(16): q.append(f"v_mul_f32 v{b+i}, v{b+i}, v{iv}")
            for i in range(8): q.append(f"v_cvt_pk_bf16_f32 v{b+i}, v{b+2*i}, v{b+2*i+1}")
            for p in range(2):
                q += [f"v_permlane32_swap_b32 v{b+4*p}, v{b+4*p+2}", f"v_permlane32_swap_b32 v{b+4*p+1}, v{b+4*p+3}"]
            return q, [f"ds_write_b128 v{aW+2*(d&1)+p}, {r(b+4*p,4)} offset:{(d>>1)*1024} ;W{x}{d}{p}" for p in range(2)]
        q0, w0 = block(0, l)
        p1 = [f"v_mov_b32 v{t1}, v{l}", f"v_permlane32_swap_b32 v{l}, v{t1}", f"v_add_f32 v{l}, v{l}, v{t1}", f"v_rcp_f32 v{l}, v{l}"] + q0 + [f"v_mov_b32 v{inv}, v{l}"]
        q1, w1 = block(1, inv)
        p2 = [('aw', aW, X0 if x == 1 else Y0)] + q1
        p3 = w0 + w1
        for d in range(2, 6):
            q, w = block(d, inv); p3 += q + w
        return p1, p2, p3
    rbid = {}; wrote = set()
    def emit(it, G=None):
        if isinstance(it, str):
            if ';W' in it: wrote.add(it[-3:])
            e(it); return
        if it[0] == 'slow':
            e(f"s_cbranch_vccnz L_slow{it[2]}"); e.lab(f"L_ret{it[2]}"); slow.append((it[1], it[2]))
        elif it[0] == 'aw':
            e(f"s_add_u32 s{sA}, s{sQw}, {((it[2] - st['kb']) * TILEB) & 0xffffffff:#x}")
            for b in range(4): e(f"v_add_u32 v{it[1]+b}, s{sA}, v{vKr+b}")
        elif it[0] == 'rd':
            _, x, k, rp, D = it
            assert all(f"{x}{d}{p}" in wrote for d in (2*k, 2*k+1) for p in range(2)), it
            e(f"v_mbcnt_lo_u32_b32 v{D}, -1, 0"); e(f"s_add_u32 s{sA}, s{sP0+rp}, {(X0 if x == 1 else Y0)*TILEB}")
            e(f"v_mbcnt_hi_u32_b32 v{D}, -1, v{D}"); e(f"v_lshlrev_b32 v{D}, 4, v{D}"); e(f"v_xor_b32 v{D}, s{sA}, v{D}")
            e(f"ds_read_b128 {r(D+4,4)}, v{D} offset:{((rp+2)*3+k)*1024}")
            rbid[it[1:4]] = e(f"ds_read_b128 {r(D,4)}, v{D} offset:{(rp*3+k)*1024}")
        elif it[0] == 'st':
            _, x, k, rp, D, j = it
            e(f"s_add_u32 s{sA}, s{sHp}, {x*TILEB + (rp+2*j)*3072}"); e.need_lds(rbid[it[1:4]])
            if 'st' in drop: e("s_nop 0")
            else: e(f"buffer_store_dwordx4 {r(D+4*j,4)}, v{vKd}, {srd(sO)}, s{sA} offen offset:{k*128}{NS}")
        elif it[0] == 'q': qread(it[1], it[2], it[3])
    cost = lambda it: 2.0 if (isinstance(it, tuple) and it[0] == 'q') or (isinstance(it, str) and it.startswith(('v_exp', 'v_pk', 'ds_write'))) else 1.0
    def base(g):
        g %= 864
        c = (1.5 if w2 else 2.0) + ((g // 12) % 2) + cd * len(byg.get(g, []))
        if g % 12 == 7 and (g // 12) % 3 == 2 and not (fewb and (g // 12) % 6 == 2 and 0 < g // 72 < 11): c += 3
        return c
    load = {}
    def split(items, g0, g1):
        tot = sum(cost(i) for i in items)
        cur = [load.get(g % 864, base(g)) if bal else (0.0 if (g // 12) % 2 == 0 else (wq - wp) * 4) for g in range(g0, g1)]
        lo, hi = 0.0, 100.0
        for _ in range(40):
            mid = (lo + hi) / 2
            if sum(max(0.0, mid - c) for c in cur) >= tot: hi = mid
            else: lo = mid
        acc = 0; k = 0; lim = 0
        for gi, g in enumerate(range(g0, g1)):
            lim += max(0.0, hi - cur[gi]); a0 = acc
            while k < len(items) and (acc + cost(items[k]) / 2 <= lim or gi == g1 - g0 - 1):
                fill[g].append(items[k]); acc += cost(items[k]); k += 1
            load[g % 864] = cur[gi] + acc - a0
    qid = {}; fid = {}
    def group_desc(G):
        G %= 72
        P, g = divmod(G, 6)
        if g % 2 == 0: return ('K', g // 2, P)
        if g == 5: return ('V', 0, P)
        return ('V', {1: 1, 3: 2}[g], (P - 1) % 12)
    def fragread(G, i):
        ty, x, t = group_desc(G)
        if 'fr' in drop and st.get('gen') and (G % 6 or G >= 72): fid[(G % 72, i)] = 0; return
        if ty == 'K': fid[(G % 72, i)] = kread(r(Fr(i), 4), slot[('K', t)], i)
        else: fid[(G % 72, i)] = vread(i, slot[('V', t)])
    def qread(x, b, tmp):
        dl = (slot[('Q', x)] - st['kb']) * TILEB
        if b == 0 or st['qd'] != dl:
            e(f"s_add_u32 s37, s{sQw}, {dl & 0xffffffff:#x}"); st['qd'] = dl
        e(f"v_add_u32 v{tmp+(b&1)}, s37, v{vKr+(b&3)}")
        qid[x] = e(f"ds_read_b128 {Qr(x,b)}, v{tmp+(b&1)} offset:{(b>>2)*1024}")
    fill = [[] for _ in range(74 * 12)]
    FREE = {0: 1, 1: 2, 2: 2, 3: 0, 4: 0, 5: 0}
    evs = [(0, n, 3 + n // 2, 2 + 5 * (n % 2)) for n in range(6)] + [(1 + n // 6, n % 6, int(9 + n * dstep - (1 if n < 6 else 0)), 3) for n in range(12)]
    for (x, n, G, g) in evs:
        for (o_, c_) in ((0, 7), (3, 4), (4, 4)): load[G*12+g+o_] = base(G*12+g+o_) + c_
    for G in range(72):
        ty, x, t = group_desc(G)
        if ty == 'K' and 'sm' not in drop:
            o = softmax(x, t == 0, f"{G}"); split(o, (G + 1) * 12 + sm0, (G + 3) * 12 + smx)
    nwrap = [len(fill[864 + i]) if i < 24 else 0 for i in range(864)]
    for i in range(24): fill[i] = fill[864 + i] + fill[i]
    nsm = [len(f) for f in fill]
    FREE = {0: 1, 1: 2, 2: 2, 3: 0, 4: 0, 5: 0}
    def event(x, n, G, g):
        k, rp = divmod(n, 2); D = S(FREE[G % 6]) + 8
        fill[G*12+g].append(('rd', x, k, rp, D))
        fill[G*12+g+3].append(('st', x, k, rp, D, 0)); fill[G*12+g+4].append(('st', x, k, rp, D, 1))
    if 'ep' not in drop:
        for x in range(3):
            p1, p2, p3 = epilogue(x); g0 = 24 * x
            split(p1, g0 + 1, g0 + 12); split(p2, g0 + 12, g0 + 24); split(p3, g0 + 24, g0 + 58)
        for ev in evs: event(*ev)
    for (x, G) in ((2, 3), (0, 69), (1, 1)):
        split([('q', x, b, S(group_desc(G)[1]) + 14) for b in range(12)], G * 12, G * 12 + 12)
    GH = int(9 + 11 * dstep) + 1
    def mf(d, a_, b_, c):
        if 'm16' not in drop: e(f"v_mfma_f32_32x32x16_bf16 {d}, {a_}, {b_}, {c}"); return
        f, lo = d[0], int(d[2:d.index(':')])
        for k in range(2):
            dd = f"{f}[{lo+4*k+8*(st['alt']&1)}:{lo+4*k+3+8*(st['alt']&1)}]"
            e.raw(f"    v_mfma_f32_16x16x32_bf16 {dd}, {a_}, {b_}, {'0' if c == '0' else dd}")
        st['alt'] += 1
    st['alt'] = 0
    def body(mode, G0=0, G1=72):
        skip = lambda G: (mode == 'first' and G in (1, 3)) or (mode == 'last' and G not in (1, 3))
        seq = [G for G in range(G0, G1) if not skip(G)]
        for G in range(G0, G1):
            ty, x, t = group_desc(G)
            P, g = divmod(G, 6)
            if mode == 'main' and G == JOIN: e.lab("L_join"); st['joinstate'] = (st['kb'], st['vb']); st['sb'] = None; st['qd'] = None
            if mode == 'main' and G == 6 and not var:
                e(f"s_cmp_eq_u32 s{sIt}, {nheads}"); e("s_cbranch_scc1 L_tail")
                st['tailstate'] = (e.nl, e.ldone, dict(rbid), st['kb'])
            if G == GH:
                e(f"s_add_u32 s{sHp}, s{sH0}, s{sOw}"); e(f"s_mov_b32 s{sO+2}, {TOTB}")
            nx = next((q for q in seq if q > G), None if mode == 'last' else G1)
            for i in range(12):
                gi = G * 12 + i
                if not skip(G):
                    if ty == 'K' and i == 0 and t == 0: e.need_lds(qid[x])
                    e.need_lds(fid[(G, i + 1 if (w2 and i % 2 == 0) else i)])
                    if ty == 'K': mf(r(S(x),16), r(Fr(i),4), Qr(x,i), '0' if i == 0 else r(S(x),16))
                    else:
                        ks, d = divmod(i, 6)
                        mf(Or(x,d), r(Fr(i),4), Qr(x,i) if 'sm' in drop else r(S(x)+4*ks,4), '0' if (t == 0 and ks == 0) else Or(x,d))
                if i == 7 and g in (2, 5) and not (fewb and g == 2 and 0 < P < 11) and mode != 'last':
                    bn = 2 * P + (0 if g == 2 else 1)
                    req = [k for k, rb in info.items() if rb % 24 == bn]
                    if prof: e("s_memtime s[76:77]"); e("s_waitcnt lgkmcnt(0)")
                    if req: e.need_vm(max(vmid[k] for k in req))
                    if prof: e("s_memtime s[80:81]"); e("s_waitcnt lgkmcnt(0)")
                    e("s_barrier")
                    if prof:
                        tp = S(2 if g == 2 else 1) + 8
                        e("s_memtime s[78:79]"); e("s_waitcnt lgkmcnt(0)")
                        e(f"v_mov_b32 v{tp}, s76"); e(f"v_mov_b32 v{tp+1}, s80"); e(f"v_mov_b32 v{tp+2}, s78"); e(f"v_mov_b32 v{tp+3}, s82")
                        e(f"buffer_store_dwordx3 v[{tp}:{tp+2}], v{tp+3}, s[52:55], 0 offen"); e.nv -= 1
                        e("s_add_u32 s82, s82, 16")
                dl = byg.get(gi, []) if mode != 'last' else []
                if dl: dma(*dl[0], 1)
                if not skip(G):
                    if i < 8: fragread(G, i + 4)
                    elif nx is not None: fragread(nx, i - 8)
                for n_, it in enumerate(fill[gi]):
                    issm = n_ < nsm[gi]; tu = it[0] if isinstance(it, tuple) else None
                    if mode == 'first':
                        if issm and n_ < nwrap[gi]: continue
                        if tu == 'st': e(f"buffer_store_dwordx4 v[0:3], v{vKd}, {srd(sO)}, 0 offen"); continue
                        if not issm and tu != 'q': continue
                    if mode == 'last' and ((issm and n_ >= nwrap[gi]) or tu == 'q'): continue
                    if tu == 'slow' and mode != 'main': it = (it[0], it[1], it[2] + mode)
                    emit(it)
                for k_, d_ in enumerate(dl): dma(*d_, 3 if k_ else 2)
    JOIN = 9
    kb0, vb0 = slot[('K', 0)], slot[('V', 11)]
    nxt = [(g, d) for g in sorted(byg) for d in byg[g] if d[2] == 1]
    late = [g for g in sorted(byg) for d in byg[g] if d[2] == 0]
    oldest = min(g for g, d in nxt if info[d[0]] % 24 < 20)
    assert max(late) < oldest, (max(late), oldest)
    ph1 = [d for g, d in nxt if g < bgap(23)]
    ph1.sort(key=lambda d: 0 if d[0] in (('Q',0),('Q',3),('Q',6),('Q',9),('K',12)) else (1 if d[0][0] == 'Q' else 2))
    for d in ph1: dma(*d)
    e.need_vm(max(vmid[d[0]] for d in ph1 if d[0][0] == 'Q' or d[0] == ('K', 12))); e("s_barrier")
    for b in range(12): qread(0, b, 176)
    rebase('K', kb0); rebase('V', vb0)
    for i in range(4): fragread(0, i)
    e("s_waitcnt lgkmcnt(0)"); e("s_barrier")
    for g, d in nxt:
        if g >= bgap(23): dma(*d)
    def advance():
        st['gen'] = st.get('gen', 0) + 1
        e(f"s_mov_b32 s{sH0}, s{sH1}")
        for k in (8, 12, 16): e(f"s_mov_b32 s{k+2}, s{64+2}")
        e(f"s_add_u32 s{sH1}, s{sH1}, {0 if hit else nwg*HEADB}")
        e(f"s_cmp_lt_u32 s{sIt}, {nheads-1}")
        e(f"s_cselect_b32 s32, {TOTB}, 0"); e(f"s_cselect_b32 s{sH1}, s{sH1}, s{sH0}")
        for k in (64, 68, 72): e(f"s_mov_b32 s{k+2}, s32")
        e.nop(4)
    def entry():
        e.nl += 100
        for i in range(4): e.nl += 1; fid[(0, i)] = e.nl
        e.ldone = e.nl - 4; st['kb'] = kb0; st['vb'] = vb0; wrote.clear()
    vm0 = (dict(vmid), e.nv)
    if var:
        advance(); entry(); body('first', 0, JOIN)
        pos = len(e.l); fs = (st['kb'], st['vb']); nv1 = e.nv
        e("s_waitcnt lgkmcnt(0)"); e("s_branch L_join")
        vmid.update(vm0[0]); e.nv = vm0[1]
    e.lab("L_loop")
    advance(); entry(); body('main', 0, JOIN)
    if var: assert nv1 == e.nv
    body('main', JOIN, 72)
    rebase('K', kb0); rebase('V', vb0)
    e(f"s_add_u32 s{sIt}, s{sIt}, 1")
    if var:
        sv = e.l; e.l = []; st['kb'], st['vb'] = fs; rebase('K', st['joinstate'][0]); rebase('V', st['joinstate'][1])
        e.l = sv[:pos] + e.l + sv[pos:]
        e(f"s_cmp_lt_u32 s{sIt}, {nheads}"); e("s_cbranch_scc1 L_loop")
        entry(); e.nop(8); e("s_waitcnt lgkmcnt(0)")
        for i in range(4): fragread(1, i)
        body('last', 0, 72)
    else:
        e("s_branch L_loop")
        e.lab("L_tail")
        e.nl, e.ldone, rb_, st['kb'] = st['tailstate']; rbid.update(rb_); e.hist = []
        e.nop(12)
        for gi in range(72, 864):
            for it in fill[gi][nsm[gi]:]:
                if not (isinstance(it, tuple) and it[0] == 'q'): emit(it)
    if stamp:
        e("s_waitcnt vmcnt(0)")
        e("s_memtime s[56:57]"); e("s_memrealtime s[58:59]"); e("s_waitcnt lgkmcnt(0)")
        e("s_sub_u32 s56, s56, s48"); e("s_sub_u32 s57, s58, s50"); e(f"s_mov_b32 s54, {64 if stamp == 2 else 0x100000}"); e("s_mov_b32 s55, 0x20000"); e("s_and_b32 s53, s53, 0xffff")
        e("v_mov_b32 v0, s56"); e("v_mov_b32 v1, s57"); e("v_mov_b32 v2, s50"); e("v_mov_b32 v3, 0")
        e(f"s_lshl_b32 s62, s2, 2"); e(f"s_add_u32 s62, s62, s{sW}"); e(f"s_lshl_b32 s62, s62, {2 if stamp == 2 else 5}"); e("v_mov_b32 v6, s62"); e("s_mov_b64 exec, 1")
        e("buffer_store_dwordx4 v[0:3], v6, s[52:55], 0 offen") if stamp != 2 else (e(f"s_cmp_eq_u32 s{sW}, 0"), e("s_cbranch_scc0 L_end"), e("buffer_store_dwordx4 v[0:3], v6, s[52:55], 0 offen"))
    e.lab("L_end"); e("s_endpgm")
    for (x, tag) in slow:
        e.lab(f"L_slow{tag}"); e.hist = []
        e.nop(2)
        for s_ in (f"v_mov_b32 v{t1}, v{t0}", f"v_permlane32_swap_b32 v{t0}, v{t1}", f"v_max_f32 v{t0}, v{t0}, v{t1}", f"v_mul_f32 v{t0}, s{sC}, v{t0}",
                   f"v_max_f32 v{t0}, v{t0}, v{vM+x}", f"v_sub_f32 v{t1}, v{vM+x}, v{t0}", f"v_exp_f32 v{t1}, v{t1}", f"v_mov_b32 v{vM+x}, v{t0}"): e(s_)
        e(f"v_mul_f32 v{vL+x}, v{vL+x}, v{t1}")
        for d in range(6):
            f, b = Oreg(x, d)
            for i in range(16):
                if f == 'v': e(f"v_mul_f32 v{b+i}, v{b+i}, v{t1}")
                else:
                    e(f"v_accvgpr_read_b32 v{t0}, a{b+i}"); e(f"v_mul_f32 v{t0}, v{t0}, v{t1}"); e(f"v_accvgpr_write_b32 a{b+i}, v{t0}")
        e.nop(2)
        e(f"s_branch L_ret{tag}")
    hdr = f"""; MHA forward, B*H=1024 heads, S=384, D=192, bf16.  Generated by gen/gen3.py
; @launch grid=({nwg},1,1) block=(256,1,1) lds={LDSB}
.amdgcn_target "amdgcn-amd-amdhsa--gfx950"
.text
.globl {NAME}_kernel
.p2align 8
.type {NAME}_kernel,@function
{NAME}_kernel:
"""
    ftr = f"""
.section .rodata,"a"
.p2align 6
.amdhsa_kernel {NAME}_kernel
  .amdhsa_next_free_vgpr 512
  .amdhsa_next_free_sgpr 96
  .amdhsa_accum_offset 256
  .amdhsa_group_segment_fixed_size 0
  .amdhsa_kernarg_size 48
  .amdhsa_user_sgpr_count 2
  .amdhsa_user_sgpr_kernarg_segment_ptr 1
  .amdhsa_system_sgpr_workgroup_id_x 1
.end_amdhsa_kernel
"""
    return hdr + "\n".join(e.l) + ftr

if __name__ == "__main__":
    kw = {}
    for a in sys.argv[2:]:
        k, v = a.split("="); kw[k] = eval(v)
    open(sys.argv[1], "w").write(build(**kw))
```

```python
import sys, math, struct, re
NAME = "standalone__mha_softmax__near_ridge"
HEADB = 384 * 192 * 2
TILEB = 12288
TOTB = 1024 * HEADB
NSLOT = 13
LDSB = NSLOT * TILEB
def f2u(x): return struct.unpack("<I", struct.pack("<f", x))[0]

def regs(tok):
    tok = tok.strip().lstrip('-')
    m = re.match(r'^([va])\[(\d+):(\d+)\]$', tok)
    if m: return {(m.group(1), i) for i in range(int(m.group(2)), int(m.group(3)) + 1)}
    m = re.match(r'^([va])(\d+)$', tok)
    if m: return {(m.group(1), int(m.group(2)))}
    return set()

class Em:
    def __init__(s):
        s.l = []; s.hist = []
        s.nl = 0; s.ldone = 0
        s.nv = 0
    def raw(s, x): s.l.append(x)
    def lab(s, x): s.l.append(x + ":")
    def nop(s, n):
        while n > 0:
            k = min(n, 16); s.l.append(f"    s_nop {k-1}"); s.hist += [('o', set(), set(), set())] * k; n -= k
    def __call__(s, x):
        op = x.split()[0]
        ops = [o.strip() for o in x[len(op):].split(';')[0].split(',')]
        ops = [o.split()[0] if o else o for o in ops]
        wr, rd, cc = set(), set(), set()
        if op.startswith('v_mfma'):
            kind = 'm'; wr = regs(ops[0]); rd = regs(ops[1]) | regs(ops[2]); cc = regs(ops[3])
        elif op.startswith('v_permlane'):
            kind = 'p'; wr = regs(ops[0]) | regs(ops[1]); rd = set(wr)
        elif op.startswith('v_cmp'):
            kind = 'v'; rd = set().union(*[regs(o) for o in ops[1:]])
        elif op.startswith('v_'):
            kind = 't' if op in ('v_exp_f32', 'v_rcp_f32') else 'v'
            wr = regs(ops[0]); rd = set().union(*[regs(o) for o in ops[1:]])
            if op.startswith('v_dot2c'): rd |= wr
        elif op.startswith('ds_read'):
            kind = 'd'; wr = regs(ops[0]); rd = regs(ops[1])
        elif op.startswith('ds_write'):
            kind = 'd'; rd = regs(ops[0]) | regs(ops[1])
        elif op.startswith('buffer_store'):
            kind = 's'; rd = regs(ops[0]) | regs(ops[1])
        elif op.startswith('buffer_load'):
            kind = 'l'; rd = regs(ops[0])
        else:
            kind = 'M' if ops[0] == 'm0' else 'o'
        need = 0
        for d, (k, w, r, c) in enumerate(reversed(s.hist[-20:])):
            q = 0
            if k == 'm':
                if kind == 'm':
                    if w & rd: q = 12
                    elif (w & cc) and w != cc: q = 10
                    elif (w & wr) and w != wr: q = 12
                elif w & (rd | wr): q = 12
            if k in 'vtp' and kind == 'm' and (w & (rd | cc)): q = max(q, 2)
            if k == 't' and kind in 'vpm' and (w & rd): q = max(q, 1)
            if k in 'vtp' and kind == 'p' and (w & rd): q = max(q, 2)
            if k == 's' and kind in 'vtp' and (r & wr): q = max(q, 2)
            if k == 'M' and kind == 'l': q = max(q, 1)
            need = max(need, q - d)
        if need > 0: s.nop(need)
        s.l.append("    " + x); s.hist.append((kind, wr, rd, cc))
        if kind == 'd': s.nl += 1; return s.nl
        if kind in 'sl': s.nv += 1; return s.nv
    def need_lds(s, i):
        if i > s.ldone:
            n = min(s.nl - i, 15); s(f"s_waitcnt lgkmcnt({n})"); s.ldone = s.nl - n
    def need_vm(s, i):
        n = s.nv - i; assert n >= 0
        s(f"s_waitcnt vmcnt({min(n, 63)})")

def build(T=8.0, nwg=256, nld='nt', nst='nt', stamp=False, drop=(), wq=1.0, wp=0.8, sm0=2, nheads=4, prof=False, hit=False, dstep=2.5, kvp=2, maxlead=140, qlead=30, qcp=1, dbg=False, w2=True, smx=2, fewb=False, pk=False, bal=True, cd=3.0, var=True, pka=False, pkf=False, cpk=1.0, pro=False, pvo=False, tl=False, dsc=None, tn=9, asp=None, dot=0):
    e = Em()
    AG = {(0,3):0, (0,5):1, (1,3):2, (1,5):3, (2,3):4, (2,5):5, (2,4):6}
    vmap = {}; n = 0
    for x in range(3):
        for d in range(6):
            if (x, d) not in AG: vmap[(x, d)] = 16 * n; n += 1
    def Oreg(x, d): return ('a', 144 + 16 * AG[(x, d)]) if (x, d) in AG else ('v', vmap[(x, d)])
    def Or(x, d): f, b = Oreg(x, d); return f"{f}[{b}:{b+15}]"
    Qr = lambda x, b: f"a[{48*x+4*b}:{48*x+4*b+3}]"
    S = lambda x: 176 + 16 * x
    Fr = lambda i: 224 + 4 * (i % 4)
    vKr, vVr, vKd, vVd, vM, vL, t0, t1 = 240, 244, 246, 247, 248, 251, 254, 255
    r = lambda a, n: f"v[{a}:{a+n-1}]"
    SRD = {('Q',0):8, ('K',0):12, ('V',0):16, ('Q',1):64, ('K',1):68, ('V',1):72}
    sO = 20
    sW, sIt, sH0, sH1, sHp, sC, sLw, sT, sA, sB, sStg, sOw = 24, 25, 26, 27, 28, 29, 30, 31, 32, 33, 34, 35
    sQw, sP0 = 36, 38
    srd = lambda a: f"s[{a}:{a+3}]"
    NL = (" " + nld) if nld else ""; NS = (" " + nst) if nst else ""

    e(f"s_cmp_ge_u32 s2, {nwg}"); e("s_cbranch_scc1 L_end")
    if stamp:
        e("s_memtime s[48:49]"); e("s_memrealtime s[50:51]"); e(f"s_load_dwordx2 s[52:53], s[0:1], {32 if stamp == 2 else 40}")
    e("s_load_dwordx4 s[40:43], s[0:1], 0"); e("s_load_dwordx4 s[44:47], s[0:1], 16")
    a, b, c, d, L = 1, 2, 3, 4, 5
    e(f"v_lshrrev_b32 v{a}, 6, v0"); e(f"v_and_b32 v{L}, 63, v0"); e(f"v_readfirstlane_b32 s{sW}, v{a}")
    e(f"s_mov_b32 s{sC}, {f2u(math.log2(math.e) / math.sqrt(192.0)):#x}"); e(f"s_mov_b32 s{sT}, {f2u(T):#x}")
    e(f"s_mov_b32 s{sIt}, 0"); e(f"s_mov_b32 s84, s{sC}"); e(f"s_mov_b32 s85, s{sC}"); e("s_mov_b32 s86, 0x3f803f80")
    e(f"v_bfe_u32 v{a}, v{L}, 3, 2"); e(f"v_mul_u32_u24 v{a}, 3072, v{a}")
    e(f"v_and_b32 v{b}, 7, v{L}"); e(f"v_lshl_add_u32 v{a}, v{b}, 7, v{a}")
    e(f"v_bfe_u32 v{b}, v{L}, 1, 3"); e(f"v_lshrrev_b32 v{c}, 5, v{L}"); e(f"v_xor_b32 v{b}, v{b}, v{c}")
    for i in range(4):
        e(f"v_xor_b32 v{d}, {2*i}, v{b}"); e(f"v_lshl_add_u32 v{vKr+i}, v{d}, 4, v{a}")
    e(f"v_bfe_u32 v{a}, v{L}, 2, 2"); e(f"v_lshl_add_u32 v{a}, v{c}, 2, v{a}"); e(f"v_lshlrev_b32 v{a}, 7, v{a}")
    e(f"v_and_b32 v{b}, 1, v{L}"); e(f"v_lshl_add_u32 v{a}, v{b}, 3, v{a}")
    e(f"v_bfe_u32 v{b}, v{L}, 1, 1"); e(f"v_bfe_u32 v{d}, v{L}, 4, 1"); e(f"v_lshl_add_u32 v{b}, v{d}, 1, v{b}")
    e(f"v_bfe_u32 v{d}, v{L}, 3, 1"); e(f"v_lshl_add_u32 v{b}, v{d}, 2, v{b}")
    for i in range(2):
        e(f"v_xor_b32 v{d}, {4*i}, v{b}"); e(f"v_lshl_add_u32 v{vVr+i}, v{d}, 4, v{a}")
    e(f"s_mul_i32 s{sLw}, s{sW}, 3072"); e(f"s_lshl_b32 s{sA}, s{sW}, 2")
    e(f"v_lshrrev_b32 v{a}, 3, v{L}"); e(f"v_mul_u32_u24 v{a}, 384, v{a}"); e(f"v_add_u32 v{a}, s{sLw}, v{a}")
    e(f"v_and_b32 v{b}, 7, v{L}"); e(f"v_lshrrev_b32 v{c}, 4, v{L}")
    e(f"v_add_u32 v{d}, s{sA}, v{c}"); e(f"v_and_b32 v{d}, 7, v{d}"); e(f"v_xor_b32 v{d}, v{d}, v{b}")
    e(f"v_lshl_add_u32 v{vKd}, v{d}, 4, v{a}")
    e(f"v_and_b32 v{d}, 1, v{c}"); e(f"v_lshlrev_b32 v{d}, 2, v{d}"); e(f"v_xor_b32 v{d}, v{d}, v{b}")
    e(f"v_lshl_add_u32 v{vVd}, v{d}, 4, v{a}")
    e(f"s_mul_i32 s{sQw}, s{sW}, {TILEB}")
    e(f"s_and_b32 s{sA}, s{sW}, 1"); e(f"s_lshl_b32 s{sA}, s{sA}, 6")
    e(f"s_add_u32 s{sP0}, s{sQw}, s{sA}"); e(f"s_xor_b32 s{sP0+1}, s{sP0}, 64")
    e(f"s_mul_i32 s{sOw}, s{sW}, {3*TILEB - 3072}")
    if hit: e("s_and_b32 s2, s2, 7")
    e(f"s_mul_i32 s{sH1}, s2, {HEADB}"); e(f"s_mov_b32 s{sH0}, s{sH1}"); e(f"s_add_u32 s{sHp}, s{sH1}, s{sOw}")
    e("s_waitcnt lgkmcnt(0)")
    for (dd, src, nr) in ((8,40,0), (12,42,0), (16,44,0), (64,40,TOTB), (68,42,TOTB), (72,44,TOTB), (sO,46,0)):
        e(f"s_mov_b32 s{dd}, s{src}"); e(f"s_and_b32 s{dd+1}, s{src+1}, 0xffff"); e(f"s_mov_b32 s{dd+2}, {nr}"); e(f"s_mov_b32 s{dd+3}, 0x20000")

    if prof:
        e("s_mov_b32 s54, 0x400000"); e("s_mov_b32 s55, 0x20000"); e("s_and_b32 s53, s53, 0xffff")
        e(f"s_lshl_b32 s82, s2, 2"); e(f"s_add_u32 s82, s82, s{sW}"); e("s_lshl_b32 s82, s82, 11"); e("s_add_u32 s82, s82, 0x100000")

    X0, Y0, R0 = 0, 4, 8
    bgap = lambda bn: (6 * (bn // 2) + (2 if bn % 2 == 0 else 5)) * 12 + 7
    kv = []
    for j in range(12):
        kv.append(('V', j, 2*j - (1 if (fewb and 0 < j < 11) else 0), 2*j+3)); kv.append(('K', j+1, 2*j+1, 2*j+3))
    extras = {('V',5): X0, ('K',6): X0+1, ('V',6): X0+2, ('K',7): X0+3}
    slot = {}; rot = [t for t in kv if (t[0], t[1]) not in extras]
    sched = []
    info = {}
    evG = lambda n: int(9 + n * dstep - (1 if n < 6 else 0)) if (n < 6 or dsc is None) else int(9 + 6 * dstep + (n - 6) * dsc)
    xfree = [b for b in range(24) if (b % 2 or not fewb) and bgap(b) > (int(8 + 5 * dstep) + 1) * 12][0]
    last = -10**9
    for t in kv:
        key = (t[0], t[1])
        if key in extras: slot[key] = extras[key]; fr = xfree
        else:
            n = rot.index(t); slot[key] = R0 + n % 5
            p = rot[n - 5]; fr = p[3] - (24 if n < 5 else 0)
        g = max(bgap(fr) if fr >= 0 else bgap(fr + 24) - 864, last + kvp, bgap(t[2]) - maxlead)
        for seg in range(3): sched.append((g + seg * kvp, key, seg)); last = g + seg * kvp
        assert last < bgap(t[2]) - 24, (t, last)
        info[key] = t[2]
    slot[('K', 0)] = slot[('K', 12)]
    yfree = [b for b in range(24) if (b % 2 or not fewb) and bgap(b) > (evG(11) + 1) * 12][0]
    for (x, base, rb, g0, g1) in ((0, X0, 22, bgap(15), bgap(22) - qlead), (1, Y0, 23, max(bgap(yfree), bgap(15) + 6), bgap(23) - qlead), (2, X0, 24, bgap(23), bgap(23) + 12 * qcp)):
        for w in range(4):
            key = ('Q', 3*w+x); slot[key] = base + w; info[key] = rb
            for seg in range(3): sched.append((g0 + (g1 - g0) * (3*w+seg) // 12, key, seg))
    if dbg:
        for k in info: print(k, slot[k], [g for g, kk, s_ in sched if kk == k], bgap(info[k]))
    byg = {}
    for (g, key, seg) in sched:
        rel = 1 if (key[0] == 'Q' or key == ('K', 12)) else 0
        if g < 0: g += 864; rel += 1
        if g >= 864: g -= 864; rel -= 1
        byg.setdefault(g, []).append((key, seg, rel))
    st = dict(kb=0, vb=0, qd=None, sb=None)
    vmid = {}
    def dma(key, seg, rel, part=3):
        k, i = key; i %= 12
        if part & 1:
            e(f"s_add_u32 m0, s{sLw}, {slot[key]*TILEB + seg*896}")
            if st['sb'] != (key, rel, st.get('gen')): e(f"s_add_u32 s{sB}, s{sH1 if rel else sH0}, {i*TILEB}"); st['sb'] = (key, rel, st.get('gen'))
        if not part & 2: return
        if 'dma' in drop: e("s_nop 0"); vmid[key] = e.nv; return
        vmid[key] = e(f"buffer_load_dwordx4 v{vVd if k == 'V' else vKd}, {srd(SRD[(k, rel)])}, s{sB} offen offset:{seg*128}{NL} lds")
    def rebase(which, s):
        key, reg, n = ('kb', vKr, 4) if which == 'K' else ('vb', vVr, 2)
        dlt = (s - st[key]) * TILEB
        if dlt:
            for i in range(n): e(f"v_add_u32 v{reg+i}, {dlt & 0xffffffff:#x}, v{reg+i}")
        st[key] = s
    def kread(dst, s, b):
        if not (0 <= s - st['kb'] <= 5): rebase('K', s)
        return e(f"ds_read_b128 {dst}, v{vKr+(b&3)} offset:{(s-st['kb'])*TILEB + (b>>2)*1024}")
    kd = lambda i: (i % 2, i // 2) if pvo else divmod(i, 6)
    def vread(i, s):
        ks, d = kd(i)
        if not (0 <= s - st['vb'] <= 4): rebase('V', s)
        for hf in range(2):
            x = e(f"ds_read_b64_tr_b16 {r(Fr(i)+2*hf,2)}, v{vVr+(d&1)} offset:{(s-st['vb'])*TILEB + (2*ks+hf)*3072 + (d>>1)*1024}")
        return x
    slow = []
    def softmax(x, first, tag):
        s = S(x); o = []
        o.append(f"v_max3_f32 v{t0}, v{s}, v{s+1}, v{s+2}")
        for i in range(3, 15, 2): o.append(f"v_max3_f32 v{t0}, v{t0}, v{s+i}, v{s+i+1}")
        o.append(f"v_max_f32 v{t0}, v{t0}, v{s+15}")
        if first:
            o += [f"v_mov_b32 v{t1}, v{t0}", f"v_permlane32_swap_b32 v{t0}, v{t1}", f"v_max_f32 v{t0}, v{t0}, v{t1}", f"v_mul_f32 v{vM+x}, s{sC}, v{t0}"]
        else:
            o += [f"v_fma_f32 v{t1}, v{t0}, s{sC}, -v{vM+x}", f"v_cmp_lt_f32 vcc, s{sT}, v{t1}", ('slow', x, tag)]
        def fin(j):
            q = []
            if dot:
                dd = lambda k: (f"v_dot2_f32_bf16 v{vL+x}, v{s+k}, s86, {'0' if (first and k == 0) else 'v%d' % (vL+x)}" if (dot == 1 or (first and k == 0))
                                else f"v_dot2c_f32_bf16 v{vL+x}, s86, v{s+k}")
                q.append(f"v_cvt_pk_bf16_f32 v{s+j}, v{s+2*j}, v{s+2*j+1}")
                if j: q.append(dd(j - 1))
                if j == 7: q.append(dd(7))
                return q
            if pka:
                if j == 1: q.append(f"v_pk_add_f32 v[{t0}:{t1}], v[{s}:{s+1}], v[{s+2}:{s+3}]")
                elif j > 1: q.append(f"v_pk_add_f32 v[{t0}:{t1}], v[{t0}:{t1}], v[{s+2*j}:{s+2*j+1}]")
                if j == 1: q.append(f"v_cvt_pk_bf16_f32 v{s}, v{s}, v{s+1}")
                if j: q.append(f"v_cvt_pk_bf16_f32 v{s+j}, v{s+2*j}, v{s+2*j+1}")
                if j == 7: q += [f"v_add_f32 v{vL+x}, v{t0}, v{t1}"] if first else [f"v_add_f32 v{t0}, v{t0}, v{t1}", f"v_add_f32 v{vL+x}, v{vL+x}, v{t0}"]
                return q
            if first and j == 0: q.append(f"v_add_f32 v{vL+x}, v{s}, v{s+1}")
            else: q += [f"v_add_f32 v{vL+x}, v{vL+x}, v{s+2*j}", f"v_add_f32 v{vL+x}, v{vL+x}, v{s+2*j+1}"]
            q.append(f"v_cvt_pk_bf16_f32 v{s+j}, v{s+2*j}, v{s+2*j+1}")
            return q
        for j in range(8):
            mp = (vM + x) & ~1; hs = (vM + x) & 1
            o += [f"v_pk_fma_f32 v[{s+2*j}:{s+2*j+1}], v[{s+2*j}:{s+2*j+1}], s[84:85], v[{mp}:{mp+1}] op_sel:[0,0,{hs}] op_sel_hi:[1,1,{hs}] neg_lo:[0,0,1] neg_hi:[0,0,1]"] if pkf else \
                 [f"v_fma_f32 v{s+2*j}, v{s+2*j}, s{sC}, -v{vM+x}", f"v_fma_f32 v{s+2*j+1}, v{s+2*j+1}, s{sC}, -v{vM+x}"]
            o += [f"v_exp_f32 v{s+2*j}, v{s+2*j}", f"v_exp_f32 v{s+2*j+1}, v{s+2*j+1}"]
            if j: o += fin(j - 1)
        o += fin(7)
        return o

    def epilogue(x):
        B0 = Oreg(x, 0)[1]; Tm = Oreg(x, 1)[1]
        inv, aW = B0+8, B0+9
        l = vL + x
        def block(d, iv):
            f, b = Oreg(x, d); q = []
            if f == 'a':
                for i in range(16): q.append(f"v_accvgpr_read_b32 v{Tm+i}, a{b+i}")
                b = Tm
            if pk and iv % 2 == 0:
                for i in range(0, 16, 2): q.append(f"v_pk_mul_f32 v[{b+i}:{b+i+1}], v[{b+i}:{b+i+1}], v[{iv}:{iv+1}] op_sel_hi:[1,0]")
            else:
                for i in range(16): q.append(f"v_mul_f32 v{b+i}, v{b+i}, v{iv}")
            for i in range(8): q.append(f"v_cvt_pk_bf16_f32 v{b+i}, v{b+2*i}, v{b+2*i+1}")
            for p in range(2):
                q += [f"v_permlane32_swap_b32 v{b+4*p}, v{b+4*p+2}", f"v_permlane32_swap_b32 v{b+4*p+1}, v{b+4*p+3}"]
            return q, [f"ds_write_b128 v{aW+2*(d&1)+p}, {r(b+4*p,4)} offset:{(d>>1)*1024} ;W{x}{d}{p}" for p in range(2)]
        q0, w0 = block(0, l)
        tm = vM + x
        p1 = [f"v_mov_b32 v{tm}, v{l}", f"v_permlane32_swap_b32 v{l}, v{tm}", f"v_add_f32 v{l}, v{l}, v{tm}", f"v_rcp_f32 v{l}, v{l}"] + q0 + [f"v_mov_b32 v{inv}, v{l}"]
        q1, w1 = block(1, inv)
        p2 = [('aw', aW, X0 if x == 1 else Y0)] + q1
        p3 = w0 + w1; prs = [p1 + p2 + p3, [], []]
        for d in range(2, 6):
            q, w = block(d, inv); p3 = p3 + q + w; prs[d // 2] += q + w
        pairs[x] = prs
        return p1, p2, p3
    pairs = {}
    rbid = {}; wrote = set()
    def emit(it, G=None):
        if isinstance(it, str):
            if ';W' in it:
                wrote.add(it[-3:])
                if it[-3] == '2': assert all(('r', int(it[-2]) // 2, rp) in wrote for rp in range(2)), it
            e(it); return
        if it[0] == 'slow':
            e(f"s_cbranch_vccnz L_slow{it[2]}"); e.lab(f"L_ret{it[2]}"); slow.append((it[1], it[2]))
        elif it[0] == 'aw':
            e(f"s_add_u32 s{sA}, s{sQw}, {((it[2] - st['kb']) * TILEB) & 0xffffffff:#x}")
            for b in range(4): e(f"v_add_u32 v{it[1]+b}, s{sA}, v{vKr+b}")
        elif it[0] == 'rd':
            _, x, k, rp, D = it
            if x == 0: wrote.add(('r', k, rp))
            assert all(f"{x}{d}{p}" in wrote for d in (2*k, 2*k+1) for p in range(2)), it
            e(f"v_mbcnt_lo_u32_b32 v{D}, -1, 0"); e(f"s_add_u32 s{sA}, s{sP0+rp}, {(X0 if x == 1 else Y0)*TILEB}")
            e(f"v_mbcnt_hi_u32_b32 v{D}, -1, v{D}"); e(f"v_lshlrev_b32 v{D}, 4, v{D}"); e(f"v_xor_b32 v{D}, s{sA}, v{D}")
            e(f"ds_read_b128 {r(D+4,4)}, v{D} offset:{((rp+2)*3+k)*1024}")
            rbid[it[1:4]] = e(f"ds_read_b128 {r(D,4)}, v{D} offset:{(rp*3+k)*1024}")
        elif it[0] == 'st':
            _, x, k, rp, D, j = it
            e(f"s_add_u32 s{sA}, s{sHp}, {x*TILEB + (rp+2*j)*3072}"); e.need_lds(rbid[it[1:4]])
            if 'st' in drop: e("s_nop 0")
            else: e(f"buffer_store_dwordx4 {r(D+4*j,4)}, v{vKd}, {srd(sO)}, s{sA} offen offset:{k*128}{NS}")
        elif it[0] == 'q': qread(it[1], it[2], it[3])
    cost = lambda it: 2.0 if (isinstance(it, tuple) and it[0] == 'q') or (isinstance(it, str) and it.startswith(('v_exp', 'ds_write'))) else (cpk if isinstance(it, str) and it.startswith('v_pk') else 1.0)
    def base(g):
        g %= 864
        c = (1.5 if w2 else 2.0) + ((g // 12) % 2) + cd * len(byg.get(g, []))
        if g % 12 == 7 and (g // 12) % 3 == 2 and not (fewb and (g // 12) % 6 == 2 and 0 < g // 72 < 11): c += 3
        return c
    load = {}
    def split(items, g0, g1):
        tot = sum(cost(i) for i in items)
        cur = [load.get(g % 864, base(g)) if bal else (0.0 if (g // 12) % 2 == 0 else (wq - wp) * 4) for g in range(g0, g1)]
        lo, hi = 0.0, 100.0
        for _ in range(40):
            mid = (lo + hi) / 2
            if sum(max(0.0, mid - c) for c in cur) >= tot: hi = mid
            else: lo = mid
        acc = 0; k = 0; lim = 0
        for gi, g in enumerate(range(g0, g1)):
            lim += max(0.0, hi - cur[gi]); a0 = acc
            while k < len(items) and (acc + cost(items[k]) / 2 <= lim or gi == g1 - g0 - 1):
                fill[g].append(items[k]); acc += cost(items[k]); k += 1
            load[g % 864] = cur[gi] + acc - a0
    qid = {}; fid = {}
    def group_desc(G):
        G %= 72
        P, g = divmod(G, 6)
        if g % 2 == 0: return ('K', g // 2, P)
        if g == 5: return ('V', 0, P)
        return ('V', {1: 1, 3: 2}[g], (P - 1) % 12)
    def fragread(G, i):
        ty, x, t = group_desc(G)
        if 'fr' in drop and st.get('gen') and (G % 6 or G >= 72): fid[(G % 72, i)] = 0; return
        if ty == 'K': fid[(G % 72, i)] = kread(r(Fr(i), 4), slot[('K', t)], i)
        else: fid[(G % 72, i)] = vread(i, slot[('V', t)])
    def qread(x, b, tmp):
        dl = (slot[('Q', x)] - st['kb']) * TILEB
        if b == 0 or st['qd'] != dl:
            e(f"s_add_u32 s37, s{sQw}, {dl & 0xffffffff:#x}"); st['qd'] = dl
        e(f"v_add_u32 v{tmp+(b&1)}, s37, v{vKr+(b&3)}")
        qid[x] = e(f"ds_read_b128 {Qr(x,b)}, v{tmp+(b&1)} offset:{(b>>2)*1024}")
    fill = [[] for _ in range(74 * 12)]
    FREE = {0: 1, 1: 2, 2: 2, 3: 0, 4: 0, 5: 0}
    evs = [(0, n) + (divmod(asp[n], 12) if asp else (3 + n // 2, 2 + 5 * (n % 2))) for n in range(6)] + [(1 + n // 6, n % 6, evG(n), 3) for n in range(12)]
    for (x, n, G, g) in evs:
        for (o_, c_) in ((0, 7), (3, 4), (4, 4)): load[G*12+g+o_] = base(G*12+g+o_) + c_
    for G in range(72):
        ty, x, t = group_desc(G)
        if ty == 'K' and 'sm' not in drop:
            o = softmax(x, t == 0, f"{G}"); split(o, (G + 1) * 12 + sm0, (G + 3) * 12 + smx)
    nwrap = [len(fill[864 + i]) if i < 24 else 0 for i in range(864)]
    for i in range(24): fill[i] = fill[864 + i] + fill[i]
    nsm = [len(f) for f in fill]
    FREE = {0: 1, 1: 2, 2: 2, 3: 0, 4: 0, 5: 0}
    def event(x, n, G, g):
        k, rp = divmod(n, 2); D = S(FREE[G % 6]) + 8
        fill[G*12+g].append(('rd', x, k, rp, D))
        fill[G*12+g+3].append(('st', x, k, rp, D, 0)); fill[G*12+g+4].append(('st', x, k, rp, D, 1))
    if 'ep' not in drop:
        for x in range(3):
            p1, p2, p3 = epilogue(x); g0 = 24 * x
            split(p1, g0 + 1, g0 + 12); split(p2, g0 + 12, g0 + 24); split(p3, g0 + 24, g0 + 58)
        for ev in evs: event(*ev)
    for (x, G) in ((2, 3), (0, 69), (1, 1)):
        split([('q', x, b, S(group_desc(G)[1]) + 14) for b in range(12)], G * 12, G * 12 + 12)
    GH = evG(11) + 1
    def mf(d, a_, b_, c):
        if 'm16' not in drop: e(f"v_mfma_f32_32x32x16_bf16 {d}, {a_}, {b_}, {c}"); return
        f, lo = d[0], int(d[2:d.index(':')])
        for k in range(2):
            dd = f"{f}[{lo+4*k+8*(st['alt']&1)}:{lo+4*k+3+8*(st['alt']&1)}]"
            e.raw(f"    v_mfma_f32_16x16x32_bf16 {dd}, {a_}, {b_}, {'0' if c == '0' else dd}")
        st['alt'] += 1
    st['alt'] = 0
    def body(mode, G0=0, G1=72):
        skip = lambda G: (mode == 'first' and G in (1, 3)) or (mode == 'last' and G not in (1, 3))
        seq = [G for G in range(G0, G1) if not skip(G)]
        for G in range(G0, G1):
            ty, x, t = group_desc(G)
            P, g = divmod(G, 6)
            if mode == 'main' and G == JOIN: e.lab("L_join"); st['joinstate'] = (st['kb'], st['vb']); st['sb'] = None; st['qd'] = None
            if mode == 'main' and G == 6 and not var:
                e(f"s_cmp_eq_u32 s{sIt}, {nheads}"); e("s_cbranch_scc1 L_tail")
                st['tailstate'] = (e.nl, e.ldone, dict(rbid), st['kb'])
            if G == GH:
                e(f"s_add_u32 s{sHp}, s{sH0}, s{sOw}"); e(f"s_mov_b32 s{sO+2}, {TOTB}")
            if pro and mode == 'first' and G == 1: e.need_vm(max(vmid[('Q', 3*w+1)] for w in range(4))); e("s_barrier")
            nx = next((q for q in seq if q > G), None if mode == 'last' else G1)
            for i in range(12):
                gi = G * 12 + i
                if not skip(G):
                    if ty == 'K' and i == 0 and t == 0: e.need_lds(qid[x])
                    e.need_lds(fid[(G, i + 1 if (w2 and i % 2 == 0) else i)])
                    if ty == 'K': mf(r(S(x),16), r(Fr(i),4), Qr(x,i), '0' if i == 0 else r(S(x),16))
                    else:
                        ks, d = kd(i)
                        mf(Or(x,d), r(Fr(i),4), Qr(x,i) if 'sm' in drop else r(S(x)+4*ks,4), '0' if (t == 0 and ks == 0) else Or(x,d))
                if i == 7 and g in (2, 5) and not (fewb and g == 2 and 0 < P < 11) and mode != 'last':
                    bn = 2 * P + (0 if g == 2 else 1)
                    req = [k for k, rb in info.items() if rb % 24 == bn]
                    if prof: e("s_memtime s[76:77]"); e("s_waitcnt lgkmcnt(0)")
                    if req: e.need_vm(max(vmid[k] for k in req))
                    if prof: e("s_memtime s[80:81]"); e("s_waitcnt lgkmcnt(0)")
                    e("s_barrier")
                    if prof:
                        tp = S(2 if g == 2 else 1) + 8
                        e("s_memtime s[78:79]"); e("s_waitcnt lgkmcnt(0)")
                        e(f"v_mov_b32 v{tp}, s76"); e(f"v_mov_b32 v{tp+1}, s80"); e(f"v_mov_b32 v{tp+2}, s78"); e(f"v_mov_b32 v{tp+3}, s82")
                        e(f"buffer_store_dwordx3 v[{tp}:{tp+2}], v{tp+3}, s[52:55], 0 offen"); e.nv -= 1
                        e("s_add_u32 s82, s82, 16")
                dl = byg.get(gi, []) if mode != 'last' else []
                if dl: dma(*dl[0], 1)
                if not skip(G):
                    if i < 8: fragread(G, i + 4)
                    elif nx is not None: fragread(nx, i - 8)
                for n_, it in enumerate(fill[gi]):
                    issm = n_ < nsm[gi]; tu = it[0] if isinstance(it, tuple) else None
                    if mode == 'first':
                        if issm and n_ < nwrap[gi]: continue
                        if tu == 'st': e(f"buffer_store_dwordx4 v[0:3], v{vKd}, {srd(sO)}, 0 offen"); continue
                        if not issm and tu != 'q': continue
                    if mode == 'last' and ((issm and n_ >= nwrap[gi]) or tu == 'q'): continue
                    if tu == 'slow' and mode != 'main': it = (it[0], it[1], it[2] + mode)
                    emit(it)
                for k_, d_ in enumerate(dl): dma(*d_, 3 if k_ else 2)
    JOIN = 9
    kb0, vb0 = slot[('K', 0)], slot[('V', 11)]
    nxt = [(g, d) for g in sorted(byg) for d in byg[g] if d[2] == 1]
    late = [g for g in sorted(byg) for d in byg[g] if d[2] == 0]
    oldest = min(g for g, d in nxt if info[d[0]] % 24 < 20)
    assert max(late) < oldest, (max(late), oldest)
    ph1 = [d for g, d in nxt if g < bgap(23)]
    ph1.sort(key=lambda d: 0 if d[0] in (('Q',0),('Q',3),('Q',6),('Q',9),('K',12)) else (1 if d[0][0] == 'Q' else 2))
    ph2 = [d for g, d in nxt if g >= bgap(23)]
    if pro:
        sv = (list(e.l), list(e.hist), e.nv, dict(st))
        for d in ph1 + ph2: dma(*d)
        vmS = (dict(vmid), e.nv)
        e.l, e.hist, e.nv = sv[0], sv[1], sv[2]; st.update(sv[3])
        early = lambda d: d[0][0] == 'Q' or d[0] in ((('K', 12), ('V', 0)) if pro == 1 else (('K', 12),))
        ph2 = [d for d in ph2 if d[0][0] == 'Q'] + [d for d in ph1 + ph2 if not early(d)]
        ph1 = [d for d in ph1 if early(d)]
    for d in ph1: dma(*d)
    e.need_vm(max(vmid[d[0]] for d in ph1 if (d[0][0] == 'Q' and (not pro or d[0][1] % 3 == 0)) or d[0] == ('K', 12))); e("s_barrier")
    for b in range(12): qread(0, b, 176)
    rebase('K', kb0); rebase('V', vb0)
    for i in range(4): fragread(0, i)
    e("s_waitcnt lgkmcnt(0)"); e("s_barrier")
    for d in ph2: dma(*d)
    def advance():
        st['gen'] = st.get('gen', 0) + 1
        e(f"s_mov_b32 s{sH0}, s{sH1}")
        for k in (8, 12, 16): e(f"s_mov_b32 s{k+2}, s{64+2}")
        e(f"s_add_u32 s{sH1}, s{sH1}, {0 if hit else nwg*HEADB}")
        e(f"s_cmp_lt_u32 s{sIt}, {nheads-1}")
        e(f"s_cselect_b32 s32, {TOTB}, 0"); e(f"s_cselect_b32 s{sH1}, s{sH1}, s{sH0}")
        for k in (64, 68, 72): e(f"s_mov_b32 s{k+2}, s32")
        e.nop(4)
    def entry():
        e.nl += 100
        for i in range(4): e.nl += 1; fid[(0, i)] = e.nl
        e.ldone = e.nl - 4; st['kb'] = kb0; st['vb'] = vb0; wrote.clear()
    vm0 = (dict(vmid), e.nv)
    if pro: assert vmS[1] == e.nv and var; vm0 = vmS
    if var:
        advance(); entry(); body('first', 0, JOIN)
        if pro: e.need_vm(max(vmid[d[0]] for d in ph2))
        pos = len(e.l); fs = (st['kb'], st['vb']); nv1 = e.nv
        e("s_waitcnt lgkmcnt(0)"); e("s_branch L_join")
        vmid.update(vm0[0]); e.nv = vm0[1]
    e.lab("L_loop")
    advance(); entry(); body('main', 0, JOIN)
    if var: assert nv1 == e.nv
    body('main', JOIN, 72)
    rebase('K', kb0); rebase('V', vb0)
    e(f"s_add_u32 s{sIt}, s{sIt}, 1")
    if var:
        sv = e.l; e.l = []; st['kb'], st['vb'] = fs; rebase('K', st['joinstate'][0]); rebase('V', st['joinstate'][1])
        e.l = sv[:pos] + e.l + sv[pos:]
        e(f"s_cmp_lt_u32 s{sIt}, {nheads}"); e("s_cbranch_scc1 L_loop")
        entry(); e.nop(8); e("s_waitcnt lgkmcnt(0)")
        for i in range(4): fragread(1, i)
        if not tl: body('last', 0, 72)
        else:
            wrap = [it for gi in range(24) for n_, it in enumerate(fill[gi]) if n_ < nwrap[gi]]
            assert all(isinstance(it, str) for it in wrap)
            L = []; pend = []; lim = {}
            for x in range(3):
                for k in range(3):
                    blk = list(pairs[x][k])
                    if x == 0 and k == 1: blk = wrap + ['MARK'] + blk
                    L += blk[:24] + pend + blk[24:]
                    L += [('rd', x, k, rp, S(0) + 8 * rp) for rp in range(2)]
                    pend = [('st', x, k, rp, S(0) + 8 * rp, j) for rp in range(2) for j in range(2)]
                if x == 0: L.append('ENDA')
            L += pend
            p = 0
            for m in range(24):
                G, i = (1, m) if m < 12 else (3, m - 12)
                ty, x, t = group_desc(G)
                if m == 12:
                    while 'MARK' in L[p:]:
                        if L[p] != 'MARK': emit(L[p])
                        p += 1
                e.need_lds(fid[(G, i)])
                ks, d = kd(i)
                mf(Or(x,d), r(Fr(i),4), r(S(x)+4*ks,4), Or(x,d))
                if i < 8: fragread(G, i + 4)
                elif G == 1: fragread(3, i - 8)
                for _ in range(tn):
                    if L[p] == 'ENDA': break
                    if L[p] != 'MARK': emit(L[p])
                    p += 1
            for it in L[p:]:
                if it not in ('MARK', 'ENDA'): emit(it)
    else:
        e("s_branch L_loop")
        e.lab("L_tail")
        e.nl, e.ldone, rb_, st['kb'] = st['tailstate']; rbid.update(rb_); e.hist = []
        e.nop(12)
        for gi in range(72, 864):
            for it in fill[gi][nsm[gi]:]:
                if not (isinstance(it, tuple) and it[0] == 'q'): emit(it)
    if stamp:
        e("s_waitcnt vmcnt(0)")
        e("s_memtime s[56:57]"); e("s_memrealtime s[58:59]"); e("s_waitcnt lgkmcnt(0)")
        e("s_sub_u32 s56, s56, s48"); e("s_sub_u32 s57, s58, s50"); e(f"s_mov_b32 s54, {64 if stamp == 2 else 0x100000}"); e("s_mov_b32 s55, 0x20000"); e("s_and_b32 s53, s53, 0xffff")
        e("v_mov_b32 v0, s56"); e("v_mov_b32 v1, s57"); e("v_mov_b32 v2, s50"); e("v_mov_b32 v3, s48")
        e(f"s_lshl_b32 s62, s2, 2"); e(f"s_add_u32 s62, s62, s{sW}"); e(f"s_lshl_b32 s62, s62, {2 if stamp == 2 else 5}"); e("v_mov_b32 v6, s62"); e("s_mov_b64 exec, 1")
        e("buffer_store_dwordx4 v[0:3], v6, s[52:55], 0 offen") if stamp != 2 else (e(f"s_cmp_eq_u32 s{sW}, 0"), e("s_cbranch_scc0 L_end"), e("buffer_store_dwordx4 v[0:3], v6, s[52:55], 0 offen"))
    e.lab("L_end"); e("s_endpgm")
    for (x, tag) in slow:
        e.lab(f"L_slow{tag}"); e.hist = []
        e.nop(2)
        for s_ in (f"v_mov_b32 v{t1}, v{t0}", f"v_permlane32_swap_b32 v{t0}, v{t1}", f"v_max_f32 v{t0}, v{t0}, v{t1}", f"v_mul_f32 v{t0}, s{sC}, v{t0}",
                   f"v_max_f32 v{t0}, v{t0}, v{vM+x}", f"v_sub_f32 v{t1}, v{vM+x}, v{t0}", f"v_exp_f32 v{t1}, v{t1}", f"v_mov_b32 v{vM+x}, v{t0}"): e(s_)
        e(f"v_mul_f32 v{vL+x}, v{vL+x}, v{t1}")
        for d in range(6):
            f, b = Oreg(x, d)
            for i in range(16):
                if f == 'v': e(f"v_mul_f32 v{b+i}, v{b+i}, v{t1}")
                else:
                    e(f"v_accvgpr_read_b32 v{t0}, a{b+i}"); e(f"v_mul_f32 v{t0}, v{t0}, v{t1}"); e(f"v_accvgpr_write_b32 a{b+i}, v{t0}")
        e.nop(2)
        e(f"s_branch L_ret{tag}")
    hdr = f"""; MHA forward, B*H=1024 heads, S=384, D=192, bf16.  Generated by gen/gen3.py
; @launch grid=({nwg},1,1) block=(256,1,1) lds={LDSB}
.amdgcn_target "amdgcn-amd-amdhsa--gfx950"
.text
.globl {NAME}_kernel
.p2align 8
.type {NAME}_kernel,@function
{NAME}_kernel:
"""
    ftr = f"""
.section .rodata,"a"
.p2align 6
.amdhsa_kernel {NAME}_kernel
  .amdhsa_next_free_vgpr 512
  .amdhsa_next_free_sgpr 96
  .amdhsa_accum_offset 256
  .amdhsa_group_segment_fixed_size 0
  .amdhsa_kernarg_size 48
  .amdhsa_user_sgpr_count 2
  .amdhsa_user_sgpr_kernarg_segment_ptr 1
  .amdhsa_system_sgpr_workgroup_id_x 1
.end_amdhsa_kernel
"""
    return hdr + "\n".join(e.l) + ftr

if __name__ == "__main__":
    kw = {}
    for a in sys.argv[2:]:
        k, v = a.split("="); kw[k] = eval(v)
    open(sys.argv[1], "w").write(build(**kw))
```

```python
import sys, math, struct, re
NAME = "standalone__mha_softmax__near_ridge"
HEADB = 384 * 192 * 2
TILEB = 12288
TOTB = 1024 * HEADB
NSLOT = 13
LDSB = NSLOT * TILEB
def f2u(x): return struct.unpack("<I", struct.pack("<f", x))[0]

def regs(tok):
    tok = tok.strip().lstrip('-')
    m = re.match(r'^([va])\[(\d+):(\d+)\]$', tok)
    if m: return {(m.group(1), i) for i in range(int(m.group(2)), int(m.group(3)) + 1)}
    m = re.match(r'^([va])(\d+)$', tok)
    if m: return {(m.group(1), int(m.group(2)))}
    return set()

class Em:
    def __init__(s):
        s.l = []; s.hist = []
        s.nl = 0; s.ldone = 0
        s.nv = 0
    def raw(s, x): s.l.append(x)
    def lab(s, x): s.l.append(x + ":")
    def nop(s, n):
        while n > 0:
            k = min(n, 16); s.l.append(f"    s_nop {k-1}"); s.hist += [('o', set(), set(), set())] * k; n -= k
    def __call__(s, x):
        op = x.split()[0]
        ops = [o.strip() for o in x[len(op):].split(';')[0].split(',')]
        ops = [o.split()[0] if o else o for o in ops]
        wr, rd, cc = set(), set(), set()
        if op.startswith('v_mfma'):
            kind = 'm'; wr = regs(ops[0]); rd = regs(ops[1]) | regs(ops[2]); cc = regs(ops[3])
        elif op.startswith('v_permlane'):
            kind = 'p'; wr = regs(ops[0]) | regs(ops[1]); rd = set(wr)
        elif op.startswith('v_cmp'):
            kind = 'v'; rd = set().union(*[regs(o) for o in ops[1:]])
        elif op.startswith('v_'):
            kind = 't' if op in ('v_exp_f32', 'v_rcp_f32') else 'v'
            wr = regs(ops[0]); rd = set().union(*[regs(o) for o in ops[1:]])
            if op.startswith('v_dot2c'): rd |= wr
        elif op.startswith('ds_read'):
            kind = 'd'; wr = regs(ops[0]); rd = regs(ops[1])
        elif op.startswith('ds_write'):
            kind = 'd'; rd = regs(ops[0]) | regs(ops[1])
        elif op.startswith('buffer_store'):
            kind = 's'; rd = regs(ops[0]) | regs(ops[1])
        elif op.startswith('buffer_load'):
            kind = 'l'; rd = regs(ops[0])
        else:
            kind = 'M' if ops[0] == 'm0' else 'o'
        need = 0
        for d, (k, w, r, c) in enumerate(reversed(s.hist[-20:])):
            q = 0
            if k == 'm':
                if kind == 'm':
                    if w & rd: q = 12
                    elif (w & cc) and w != cc: q = 10
                    elif (w & wr) and w != wr: q = 12
                elif w & (rd | wr): q = 12
            if k in 'vtp' and kind == 'm' and (w & (rd | cc)): q = max(q, 2)
            if k == 't' and kind in 'vpm' and (w & rd): q = max(q, 1)
            if k in 'vtp' and kind == 'p' and (w & rd): q = max(q, 2)
            if k == 's' and kind in 'vtp' and (r & wr): q = max(q, 2)
            if k == 'M' and kind == 'l': q = max(q, 1)
            need = max(need, q - d)
        if need > 0: s.nop(need)
        s.l.append("    " + x); s.hist.append((kind, wr, rd, cc))
        if kind == 'd': s.nl += 1; return s.nl
        if kind in 'sl': s.nv += 1; return s.nv
    def need_lds(s, i):
        if i > s.ldone:
            n = min(s.nl - i, 15); s(f"s_waitcnt lgkmcnt({n})"); s.ldone = s.nl - n
    def need_vm(s, i):
        n = s.nv - i; assert n >= 0
        s(f"s_waitcnt vmcnt({min(n, 63)})")

def build(T=8.0, nwg=256, nld='nt', nst='nt', stamp=False, drop=(), wq=1.0, wp=0.8, sm0=2, nheads=4, prof=False, hit=False, dstep=2.5, kvp=2, maxlead=140, qlead=30, qcp=1, dbg=False, w2=True, smx=2, fewb=False, pk=False, bal=True, cd=3.0, var=True, pka=False, pkf=False, cpk=1.0, pro=False, pvo=False, tl=False, dsc=None, tn=9, asp=None, dot=0, ce=2.0, cb0=1.5, cb1=1.0, cbar=3.0):
    e = Em()
    AG = {(0,3):0, (0,5):1, (1,3):2, (1,5):3, (2,3):4, (2,5):5, (2,4):6}
    vmap = {}; n = 0
    for x in range(3):
        for d in range(6):
            if (x, d) not in AG: vmap[(x, d)] = 16 * n; n += 1
    def Oreg(x, d): return ('a', 144 + 16 * AG[(x, d)]) if (x, d) in AG else ('v', vmap[(x, d)])
    def Or(x, d): f, b = Oreg(x, d); return f"{f}[{b}:{b+15}]"
    Qr = lambda x, b: f"a[{48*x+4*b}:{48*x+4*b+3}]"
    S = lambda x: 176 + 16 * x
    Fr = lambda i: 224 + 4 * (i % 4)
    vKr, vVr, vKd, vVd, vM, vL, t0, t1 = 240, 244, 246, 247, 248, 251, 254, 255
    r = lambda a, n: f"v[{a}:{a+n-1}]"
    SRD = {('Q',0):8, ('K',0):12, ('V',0):16, ('Q',1):64, ('K',1):68, ('V',1):72}
    sO = 20
    sW, sIt, sH0, sH1, sHp, sC, sLw, sT, sA, sB, sStg, sOw = 24, 25, 26, 27, 28, 29, 30, 31, 32, 33, 34, 35
    sQw, sP0 = 36, 38
    srd = lambda a: f"s[{a}:{a+3}]"
    NL = (" " + nld) if nld else ""; NS = (" " + nst) if nst else ""

    e(f"s_cmp_ge_u32 s2, {nwg}"); e("s_cbranch_scc1 L_end")
    if stamp:
        e("s_memtime s[48:49]"); e("s_memrealtime s[50:51]"); e(f"s_load_dwordx2 s[52:53], s[0:1], {32 if stamp == 2 else 40}")
    e("s_load_dwordx4 s[40:43], s[0:1], 0"); e("s_load_dwordx4 s[44:47], s[0:1], 16")
    a, b, c, d, L = 1, 2, 3, 4, 5
    e(f"v_lshrrev_b32 v{a}, 6, v0"); e(f"v_and_b32 v{L}, 63, v0"); e(f"v_readfirstlane_b32 s{sW}, v{a}")
    e(f"s_mov_b32 s{sC}, {f2u(math.log2(math.e) / math.sqrt(192.0)):#x}"); e(f"s_mov_b32 s{sT}, {f2u(T):#x}")
    e(f"s_mov_b32 s{sIt}, 0"); e(f"s_mov_b32 s84, s{sC}"); e(f"s_mov_b32 s85, s{sC}"); e("s_mov_b32 s86, 0x3f803f80")
    e(f"v_bfe_u32 v{a}, v{L}, 3, 2"); e(f"v_mul_u32_u24 v{a}, 3072, v{a}")
    e(f"v_and_b32 v{b}, 7, v{L}"); e(f"v_lshl_add_u32 v{a}, v{b}, 7, v{a}")
    e(f"v_bfe_u32 v{b}, v{L}, 1, 3"); e(f"v_lshrrev_b32 v{c}, 5, v{L}"); e(f"v_xor_b32 v{b}, v{b}, v{c}")
    for i in range(4):
        e(f"v_xor_b32 v{d}, {2*i}, v{b}"); e(f"v_lshl_add_u32 v{vKr+i}, v{d}, 4, v{a}")
    e(f"v_bfe_u32 v{a}, v{L}, 2, 2"); e(f"v_lshl_add_u32 v{a}, v{c}, 2, v{a}"); e(f"v_lshlrev_b32 v{a}, 7, v{a}")
    e(f"v_and_b32 v{b}, 1, v{L}"); e(f"v_lshl_add_u32 v{a}, v{b}, 3, v{a}")
    e(f"v_bfe_u32 v{b}, v{L}, 1, 1"); e(f"v_bfe_u32 v{d}, v{L}, 4, 1"); e(f"v_lshl_add_u32 v{b}, v{d}, 1, v{b}")
    e(f"v_bfe_u32 v{d}, v{L}, 3, 1"); e(f"v_lshl_add_u32 v{b}, v{d}, 2, v{b}")
    for i in range(2):
        e(f"v_xor_b32 v{d}, {4*i}, v{b}"); e(f"v_lshl_add_u32 v{vVr+i}, v{d}, 4, v{a}")
    e(f"s_mul_i32 s{sLw}, s{sW}, 3072"); e(f"s_lshl_b32 s{sA}, s{sW}, 2")
    e(f"v_lshrrev_b32 v{a}, 3, v{L}"); e(f"v_mul_u32_u24 v{a}, 384, v{a}"); e(f"v_add_u32 v{a}, s{sLw}, v{a}")
    e(f"v_and_b32 v{b}, 7, v{L}"); e(f"v_lshrrev_b32 v{c}, 4, v{L}")
    e(f"v_add_u32 v{d}, s{sA}, v{c}"); e(f"v_and_b32 v{d}, 7, v{d}"); e(f"v_xor_b32 v{d}, v{d}, v{b}")
    e(f"v_lshl_add_u32 v{vKd}, v{d}, 4, v{a}")
    e(f"v_and_b32 v{d}, 1, v{c}"); e(f"v_lshlrev_b32 v{d}, 2, v{d}"); e(f"v_xor_b32 v{d}, v{d}, v{b}")
    e(f"v_lshl_add_u32 v{vVd}, v{d}, 4, v{a}")
    e(f"s_mul_i32 s{sQw}, s{sW}, {TILEB}")
    e(f"s_and_b32 s{sA}, s{sW}, 1"); e(f"s_lshl_b32 s{sA}, s{sA}, 6")
    e(f"s_add_u32 s{sP0}, s{sQw}, s{sA}"); e(f"s_xor_b32 s{sP0+1}, s{sP0}, 64")
    e(f"s_mul_i32 s{sOw}, s{sW}, {3*TILEB - 3072}")
    if hit: e("s_and_b32 s2, s2, 7")
    e(f"s_mul_i32 s{sH1}, s2, {HEADB}"); e(f"s_mov_b32 s{sH0}, s{sH1}"); e(f"s_add_u32 s{sHp}, s{sH1}, s{sOw}")
    e("s_waitcnt lgkmcnt(0)")
    for (dd, src, nr) in ((8,40,0), (12,42,0), (16,44,0), (64,40,TOTB), (68,42,TOTB), (72,44,TOTB), (sO,46,0)):
        e(f"s_mov_b32 s{dd}, s{src}"); e(f"s_and_b32 s{dd+1}, s{src+1}, 0xffff"); e(f"s_mov_b32 s{dd+2}, {nr}"); e(f"s_mov_b32 s{dd+3}, 0x20000")

    if prof:
        e("s_mov_b32 s54, 0x400000"); e("s_mov_b32 s55, 0x20000"); e("s_and_b32 s53, s53, 0xffff")
        e(f"s_lshl_b32 s82, s2, 2"); e(f"s_add_u32 s82, s82, s{sW}"); e("s_lshl_b32 s82, s82, 11"); e("s_add_u32 s82, s82, 0x100000")

    X0, Y0, R0 = 0, 4, 8
    bgap = lambda bn: (6 * (bn // 2) + (2 if bn % 2 == 0 else 5)) * 12 + 7
    kv = []
    for j in range(12):
        kv.append(('V', j, 2*j - (1 if (fewb and 0 < j < 11) else 0), 2*j+3)); kv.append(('K', j+1, 2*j+1, 2*j+3))
    extras = {('V',5): X0, ('K',6): X0+1, ('V',6): X0+2, ('K',7): X0+3}
    slot = {}; rot = [t for t in kv if (t[0], t[1]) not in extras]
    sched = []
    info = {}
    evG = lambda n: int(9 + n * dstep - (1 if n < 6 else 0)) if (n < 6 or dsc is None) else int(9 + 6 * dstep + (n - 6) * dsc)
    xfree = [b for b in range(24) if (b % 2 or not fewb) and bgap(b) > (int(8 + 5 * dstep) + 1) * 12][0]
    last = -10**9
    for t in kv:
        key = (t[0], t[1])
        if key in extras: slot[key] = extras[key]; fr = xfree
        else:
            n = rot.index(t); slot[key] = R0 + n % 5
            p = rot[n - 5]; fr = p[3] - (24 if n < 5 else 0)
        g = max(bgap(fr) if fr >= 0 else bgap(fr + 24) - 864, last + kvp, bgap(t[2]) - maxlead)
        for seg in range(3): sched.append((g + seg * kvp, key, seg)); last = g + seg * kvp
        assert last < bgap(t[2]) - 24, (t, last)
        info[key] = t[2]
    slot[('K', 0)] = slot[('K', 12)]
    yfree = [b for b in range(24) if (b % 2 or not fewb) and bgap(b) > (evG(11) + 1) * 12][0]
    for (x, base, rb, g0, g1) in ((0, X0, 22, bgap(15), bgap(22) - qlead), (1, Y0, 23, max(bgap(yfree), bgap(15) + 6), bgap(23) - qlead), (2, X0, 24, bgap(23), bgap(23) + 12 * qcp)):
        for w in range(4):
            key = ('Q', 3*w+x); slot[key] = base + w; info[key] = rb
            for seg in range(3): sched.append((g0 + (g1 - g0) * (3*w+seg) // 12, key, seg))
    if dbg:
        for k in info: print(k, slot[k], [g for g, kk, s_ in sched if kk == k], bgap(info[k]))
    byg = {}
    for (g, key, seg) in sched:
        rel = 1 if (key[0] == 'Q' or key == ('K', 12)) else 0
        if g < 0: g += 864; rel += 1
        if g >= 864: g -= 864; rel -= 1
        byg.setdefault(g, []).append((key, seg, rel))
    st = dict(kb=0, vb=0, qd=None, sb=None)
    vmid = {}
    def dma(key, seg, rel, part=3):
        k, i = key; i %= 12
        if part & 1:
            e(f"s_add_u32 m0, s{sLw}, {slot[key]*TILEB + seg*896}")
            if st['sb'] != (key, rel, st.get('gen')): e(f"s_add_u32 s{sB}, s{sH1 if rel else sH0}, {i*TILEB}"); st['sb'] = (key, rel, st.get('gen'))
        if not part & 2: return
        if 'dma' in drop: e("s_nop 0"); vmid[key] = e.nv; return
        vmid[key] = e(f"buffer_load_dwordx4 v{vVd if k == 'V' else vKd}, {srd(SRD[(k, rel)])}, s{sB} offen offset:{seg*128}{NL} lds")
    def rebase(which, s):
        key, reg, n = ('kb', vKr, 4) if which == 'K' else ('vb', vVr, 2)
        dlt = (s - st[key]) * TILEB
        if dlt:
            for i in range(n): e(f"v_add_u32 v{reg+i}, {dlt & 0xffffffff:#x}, v{reg+i}")
        st[key] = s
    def kread(dst, s, b):
        if not (0 <= s - st['kb'] <= 5): rebase('K', s)
        return e(f"ds_read_b128 {dst}, v{vKr+(b&3)} offset:{(s-st['kb'])*TILEB + (b>>2)*1024}")
    kd = lambda i: (i % 2, i // 2) if pvo else divmod(i, 6)
    def vread(i, s):
        ks, d = kd(i)
        if not (0 <= s - st['vb'] <= 4): rebase('V', s)
        for hf in range(2):
            x = e(f"ds_read_b64_tr_b16 {r(Fr(i)+2*hf,2)}, v{vVr+(d&1)} offset:{(s-st['vb'])*TILEB + (2*ks+hf)*3072 + (d>>1)*1024}")
        return x
    slow = []
    def softmax(x, first, tag):
        s = S(x); o = []
        o.append(f"v_max3_f32 v{t0}, v{s}, v{s+1}, v{s+2}")
        for i in range(3, 15, 2): o.append(f"v_max3_f32 v{t0}, v{t0}, v{s+i}, v{s+i+1}")
        o.append(f"v_max_f32 v{t0}, v{t0}, v{s+15}")
        if first:
            o += [f"v_mov_b32 v{t1}, v{t0}", f"v_permlane32_swap_b32 v{t0}, v{t1}", f"v_max_f32 v{t0}, v{t0}, v{t1}", f"v_mul_f32 v{vM+x}, s{sC}, v{t0}"]
        else:
            o += [f"v_fma_f32 v{t1}, v{t0}, s{sC}, -v{vM+x}", f"v_cmp_lt_f32 vcc, s{sT}, v{t1}", ('slow', x, tag)]
        def fin(j):
            q = []
            if dot:
                dd = lambda k: (f"v_dot2_f32_bf16 v{vL+x}, v{s+k}, s86, {'0' if (first and k == 0) else 'v%d' % (vL+x)}" if (dot == 1 or (first and k == 0))
                                else f"v_dot2c_f32_bf16 v{vL+x}, s86, v{s+k}")
                q.append(f"v_cvt_pk_bf16_f32 v{s+j}, v{s+2*j}, v{s+2*j+1}")
                if j: q.append(dd(j - 1))
                if j == 7: q.append(dd(7))
                return q
            if pka:
                if j == 1: q.append(f"v_pk_add_f32 v[{t0}:{t1}], v[{s}:{s+1}], v[{s+2}:{s+3}]")
                elif j > 1: q.append(f"v_pk_add_f32 v[{t0}:{t1}], v[{t0}:{t1}], v[{s+2*j}:{s+2*j+1}]")
                if j == 1: q.append(f"v_cvt_pk_bf16_f32 v{s}, v{s}, v{s+1}")
                if j: q.append(f"v_cvt_pk_bf16_f32 v{s+j}, v{s+2*j}, v{s+2*j+1}")
                if j == 7: q += [f"v_add_f32 v{vL+x}, v{t0}, v{t1}"] if first else [f"v_add_f32 v{t0}, v{t0}, v{t1}", f"v_add_f32 v{vL+x}, v{vL+x}, v{t0}"]
                return q
            if first and j == 0: q.append(f"v_add_f32 v{vL+x}, v{s}, v{s+1}")
            else: q += [f"v_add_f32 v{vL+x}, v{vL+x}, v{s+2*j}", f"v_add_f32 v{vL+x}, v{vL+x}, v{s+2*j+1}"]
            q.append(f"v_cvt_pk_bf16_f32 v{s+j}, v{s+2*j}, v{s+2*j+1}")
            return q
        for j in range(8):
            mp = (vM + x) & ~1; hs = (vM + x) & 1
            o += [f"v_pk_fma_f32 v[{s+2*j}:{s+2*j+1}], v[{s+2*j}:{s+2*j+1}], s[84:85], v[{mp}:{mp+1}] op_sel:[0,0,{hs}] op_sel_hi:[1,1,{hs}] neg_lo:[0,0,1] neg_hi:[0,0,1]"] if pkf else \
                 [f"v_fma_f32 v{s+2*j}, v{s+2*j}, s{sC}, -v{vM+x}", f"v_fma_f32 v{s+2*j+1}, v{s+2*j+1}, s{sC}, -v{vM+x}"]
            o += [f"v_exp_f32 v{s+2*j}, v{s+2*j}", f"v_exp_f32 v{s+2*j+1}, v{s+2*j+1}"]
            if j: o += fin(j - 1)
        o += fin(7)
        return o

    def epilogue(x):
        B0 = Oreg(x, 0)[1]; Tm = Oreg(x, 1)[1]
        inv, aW = B0+8, B0+9
        l = vL + x
        def block(d, iv):
            f, b = Oreg(x, d); q = []
            if f == 'a':
                for i in range(16): q.append(f"v_accvgpr_read_b32 v{Tm+i}, a{b+i}")
                b = Tm
            if pk and iv % 2 == 0:
                for i in range(0, 16, 2): q.append(f"v_pk_mul_f32 v[{b+i}:{b+i+1}], v[{b+i}:{b+i+1}], v[{iv}:{iv+1}] op_sel_hi:[1,0]")
            else:
                for i in range(16): q.append(f"v_mul_f32 v{b+i}, v{b+i}, v{iv}")
            for i in range(8): q.append(f"v_cvt_pk_bf16_f32 v{b+i}, v{b+2*i}, v{b+2*i+1}")
            for p in range(2):
                q += [f"v_permlane32_swap_b32 v{b+4*p}, v{b+4*p+2}", f"v_permlane32_swap_b32 v{b+4*p+1}, v{b+4*p+3}"]
            return q, [f"ds_write_b128 v{aW+2*(d&1)+p}, {r(b+4*p,4)} offset:{(d>>1)*1024} ;W{x}{d}{p}" for p in range(2)]
        q0, w0 = block(0, l)
        tm = vM + x
        p1 = [f"v_mov_b32 v{tm}, v{l}", f"v_permlane32_swap_b32 v{l}, v{tm}", f"v_add_f32 v{l}, v{l}, v{tm}", f"v_rcp_f32 v{l}, v{l}"] + q0 + [f"v_mov_b32 v{inv}, v{l}"]
        q1, w1 = block(1, inv)
        p2 = [('aw', aW, X0 if x == 1 else Y0)] + q1
        p3 = w0 + w1; prs = [p1 + p2 + p3, [], []]
        for d in range(2, 6):
            q, w = block(d, inv); p3 = p3 + q + w; prs[d // 2] += q + w
        pairs[x] = prs
        return p1, p2, p3
    pairs = {}
    rbid = {}; wrote = set()
    def emit(it, G=None):
        if isinstance(it, str):
            if ';W' in it:
                wrote.add(it[-3:])
                if it[-3] == '2': assert all(('r', int(it[-2]) // 2, rp) in wrote for rp in range(2)), it
            e(it); return
        if it[0] == 'slow':
            e(f"s_cbranch_vccnz L_slow{it[2]}"); e.lab(f"L_ret{it[2]}"); slow.append((it[1], it[2]))
        elif it[0] == 'aw':
            e(f"s_add_u32 s{sA}, s{sQw}, {((it[2] - st['kb']) * TILEB) & 0xffffffff:#x}")
            for b in range(4): e(f"v_add_u32 v{it[1]+b}, s{sA}, v{vKr+b}")
        elif it[0] == 'rd':
            _, x, k, rp, D = it
            if x == 0: wrote.add(('r', k, rp))
            assert all(f"{x}{d}{p}" in wrote for d in (2*k, 2*k+1) for p in range(2)), it
            e(f"v_mbcnt_lo_u32_b32 v{D}, -1, 0"); e(f"s_add_u32 s{sA}, s{sP0+rp}, {(X0 if x == 1 else Y0)*TILEB}")
            e(f"v_mbcnt_hi_u32_b32 v{D}, -1, v{D}"); e(f"v_lshlrev_b32 v{D}, 4, v{D}"); e(f"v_xor_b32 v{D}, s{sA}, v{D}")
            e(f"ds_read_b128 {r(D+4,4)}, v{D} offset:{((rp+2)*3+k)*1024}")
            rbid[it[1:4]] = e(f"ds_read_b128 {r(D,4)}, v{D} offset:{(rp*3+k)*1024}")
        elif it[0] == 'st':
            _, x, k, rp, D, j = it
            e(f"s_add_u32 s{sA}, s{sHp}, {x*TILEB + (rp+2*j)*3072}"); e.need_lds(rbid[it[1:4]])
            if 'st' in drop: e("s_nop 0")
            else: e(f"buffer_store_dwordx4 {r(D+4*j,4)}, v{vKd}, {srd(sO)}, s{sA} offen offset:{k*128}{NS}")
        elif it[0] == 'q': qread(it[1], it[2], it[3])
    cost = lambda it: ce if (isinstance(it, str) and it.startswith('v_exp')) else 2.0 if (isinstance(it, tuple) and it[0] == 'q') or (isinstance(it, str) and it.startswith('ds_write')) else (cpk if isinstance(it, str) and it.startswith('v_pk') else 1.0)
    def base(g):
        g %= 864
        c = (cb0 if w2 else 2.0) + cb1 * ((g // 12) % 2) + cd * len(byg.get(g, []))
        if g % 12 == 7 and (g // 12) % 3 == 2 and not (fewb and (g // 12) % 6 == 2 and 0 < g // 72 < 11): c += cbar
        return c
    load = {}
    def split(items, g0, g1):
        tot = sum(cost(i) for i in items)
        cur = [load.get(g % 864, base(g)) if bal else (0.0 if (g // 12) % 2 == 0 else (wq - wp) * 4) for g in range(g0, g1)]
        lo, hi = 0.0, 100.0
        for _ in range(40):
            mid = (lo + hi) / 2
            if sum(max(0.0, mid - c) for c in cur) >= tot: hi = mid
            else: lo = mid
        acc = 0; k = 0; lim = 0
        for gi, g in enumerate(range(g0, g1)):
            lim += max(0.0, hi - cur[gi]); a0 = acc
            while k < len(items) and (acc + cost(items[k]) / 2 <= lim or gi == g1 - g0 - 1):
                fill[g].append(items[k]); acc += cost(items[k]); k += 1
            load[g % 864] = cur[gi] + acc - a0
    qid = {}; fid = {}
    def group_desc(G):
        G %= 72
        P, g = divmod(G, 6)
        if g % 2 == 0: return ('K', g // 2, P)
        if g == 5: return ('V', 0, P)
        return ('V', {1: 1, 3: 2}[g], (P - 1) % 12)
    def fragread(G, i):
        ty, x, t = group_desc(G)
        if 'fr' in drop and st.get('gen') and (G % 6 or G >= 72): fid[(G % 72, i)] = 0; return
        if ty == 'K': fid[(G % 72, i)] = kread(r(Fr(i), 4), slot[('K', t)], i)
        else: fid[(G % 72, i)] = vread(i, slot[('V', t)])
    def qread(x, b, tmp):
        dl = (slot[('Q', x)] - st['kb']) * TILEB
        if b == 0 or st['qd'] != dl:
            e(f"s_add_u32 s37, s{sQw}, {dl & 0xffffffff:#x}"); st['qd'] = dl
        e(f"v_add_u32 v{tmp+(b&1)}, s37, v{vKr+(b&3)}")
        qid[x] = e(f"ds_read_b128 {Qr(x,b)}, v{tmp+(b&1)} offset:{(b>>2)*1024}")
    fill = [[] for _ in range(74 * 12)]
    FREE = {0: 1, 1: 2, 2: 2, 3: 0, 4: 0, 5: 0}
    evs = [(0, n) + (divmod(asp[n], 12) if asp else (3 + n // 2, 2 + 5 * (n % 2))) for n in range(6)] + [(1 + n // 6, n % 6, evG(n), 3) for n in range(12)]
    for (x, n, G, g) in evs:
        for (o_, c_) in ((0, 7), (3, 4), (4, 4)): load[G*12+g+o_] = base(G*12+g+o_) + c_
    for G in range(72):
        ty, x, t = group_desc(G)
        if ty == 'K' and 'sm' not in drop:
            o = softmax(x, t == 0, f"{G}"); split(o, (G + 1) * 12 + sm0, (G + 3) * 12 + smx)
    nwrap = [len(fill[864 + i]) if i < 24 else 0 for i in range(864)]
    for i in range(24): fill[i] = fill[864 + i] + fill[i]
    nsm = [len(f) for f in fill]
    FREE = {0: 1, 1: 2, 2: 2, 3: 0, 4: 0, 5: 0}
    def event(x, n, G, g):
        k, rp = divmod(n, 2); D = S(FREE[G % 6]) + 8
        fill[G*12+g].append(('rd', x, k, rp, D))
        fill[G*12+g+3].append(('st', x, k, rp, D, 0)); fill[G*12+g+4].append(('st', x, k, rp, D, 1))
    if 'ep' not in drop:
        for x in range(3):
            p1, p2, p3 = epilogue(x); g0 = 24 * x
            split(p1, g0 + 1, g0 + 12); split(p2, g0 + 12, g0 + 24); split(p3, g0 + 24, g0 + 58)
        for ev in evs: event(*ev)
    for (x, G) in ((2, 3), (0, 69), (1, 1)):
        split([('q', x, b, S(group_desc(G)[1]) + 14) for b in range(12)], G * 12, G * 12 + 12)
    GH = evG(11) + 1
    def mf(d, a_, b_, c):
        if 'm16' not in drop: e(f"v_mfma_f32_32x32x16_bf16 {d}, {a_}, {b_}, {c}"); return
        f, lo = d[0], int(d[2:d.index(':')])
        for k in range(2):
            dd = f"{f}[{lo+4*k+8*(st['alt']&1)}:{lo+4*k+3+8*(st['alt']&1)}]"
            e.raw(f"    v_mfma_f32_16x16x32_bf16 {dd}, {a_}, {b_}, {'0' if c == '0' else dd}")
        st['alt'] += 1
    st['alt'] = 0
    def body(mode, G0=0, G1=72):
        skip = lambda G: (mode == 'first' and G in (1, 3)) or (mode == 'last' and G not in (1, 3))
        seq = [G for G in range(G0, G1) if not skip(G)]
        for G in range(G0, G1):
            ty, x, t = group_desc(G)
            P, g = divmod(G, 6)
            if mode == 'main' and G == JOIN: e.lab("L_join"); st['joinstate'] = (st['kb'], st['vb']); st['sb'] = None; st['qd'] = None
            if mode == 'main' and G == 6 and not var:
                e(f"s_cmp_eq_u32 s{sIt}, {nheads}"); e("s_cbranch_scc1 L_tail")
                st['tailstate'] = (e.nl, e.ldone, dict(rbid), st['kb'])
            if G == GH:
                e(f"s_add_u32 s{sHp}, s{sH0}, s{sOw}"); e(f"s_mov_b32 s{sO+2}, {TOTB}")
            if pro and mode == 'first' and G == 1: e.need_vm(max(vmid[('Q', 3*w+1)] for w in range(4))); e("s_barrier")
            nx = next((q for q in seq if q > G), None if mode == 'last' else G1)
            for i in range(12):
                gi = G * 12 + i
                if not skip(G):
                    if ty == 'K' and i == 0 and t == 0: e.need_lds(qid[x])
                    e.need_lds(fid[(G, i + 1 if (w2 and i % 2 == 0) else i)])
                    if ty == 'K': mf(r(S(x),16), r(Fr(i),4), Qr(x,i), '0' if i == 0 else r(S(x),16))
                    else:
                        ks, d = kd(i)
                        mf(Or(x,d), r(Fr(i),4), Qr(x,i) if 'sm' in drop else r(S(x)+4*ks,4), '0' if (t == 0 and ks == 0) else Or(x,d))
                if i == 7 and g in (2, 5) and not (fewb and g == 2 and 0 < P < 11) and mode != 'last':
                    bn = 2 * P + (0 if g == 2 else 1)
                    req = [k for k, rb in info.items() if rb % 24 == bn]
                    if prof: e("s_memtime s[76:77]"); e("s_waitcnt lgkmcnt(0)")
                    if req: e.need_vm(max(vmid[k] for k in req))
                    if prof: e("s_memtime s[80:81]"); e("s_waitcnt lgkmcnt(0)")
                    e("s_barrier")
                    if prof:
                        tp = S(2 if g == 2 else 1) + 8
                        e("s_memtime s[78:79]"); e("s_waitcnt lgkmcnt(0)")
                        e(f"v_mov_b32 v{tp}, s76"); e(f"v_mov_b32 v{tp+1}, s80"); e(f"v_mov_b32 v{tp+2}, s78"); e(f"v_mov_b32 v{tp+3}, s82")
                        e(f"buffer_store_dwordx3 v[{tp}:{tp+2}], v{tp+3}, s[52:55], 0 offen"); e.nv -= 1
                        e("s_add_u32 s82, s82, 16")
                dl = byg.get(gi, []) if mode != 'last' else []
                if dl: dma(*dl[0], 1)
                if not skip(G):
                    if i < 8: fragread(G, i + 4)
                    elif nx is not None: fragread(nx, i - 8)
                for n_, it in enumerate(fill[gi]):
                    issm = n_ < nsm[gi]; tu = it[0] if isinstance(it, tuple) else None
                    if mode == 'first':
                        if issm and n_ < nwrap[gi]: continue
                        if tu == 'st': e(f"buffer_store_dwordx4 v[0:3], v{vKd}, {srd(sO)}, 0 offen"); continue
                        if not issm and tu != 'q': continue
                    if mode == 'last' and ((issm and n_ >= nwrap[gi]) or tu == 'q'): continue
                    if tu == 'slow' and mode != 'main': it = (it[0], it[1], it[2] + mode)
                    emit(it)
                for k_, d_ in enumerate(dl): dma(*d_, 3 if k_ else 2)
    JOIN = 9
    kb0, vb0 = slot[('K', 0)], slot[('V', 11)]
    nxt = [(g, d) for g in sorted(byg) for d in byg[g] if d[2] == 1]
    late = [g for g in sorted(byg) for d in byg[g] if d[2] == 0]
    oldest = min(g for g, d in nxt if info[d[0]] % 24 < 20)
    assert max(late) < oldest, (max(late), oldest)
    ph1 = [d for g, d in nxt if g < bgap(23)]
    ph1.sort(key=lambda d: 0 if d[0] in (('Q',0),('Q',3),('Q',6),('Q',9),('K',12)) else (1 if d[0][0] == 'Q' else 2))
    ph2 = [d for g, d in nxt if g >= bgap(23)]
    if pro:
        sv = (list(e.l), list(e.hist), e.nv, dict(st))
        for d in ph1 + ph2: dma(*d)
        vmS = (dict(vmid), e.nv)
        e.l, e.hist, e.nv = sv[0], sv[1], sv[2]; st.update(sv[3])
        early = lambda d: d[0][0] == 'Q' or d[0] in ((('K', 12), ('V', 0)) if pro == 1 else (('K', 12),))
        ph2 = [d for d in ph2 if d[0][0] == 'Q'] + [d for d in ph1 + ph2 if not early(d)]
        ph1 = [d for d in ph1 if early(d)]
    for d in ph1: dma(*d)
    e.need_vm(max(vmid[d[0]] for d in ph1 if (d[0][0] == 'Q' and (not pro or d[0][1] % 3 == 0)) or d[0] == ('K', 12))); e("s_barrier")
    for b in range(12): qread(0, b, 176)
    rebase('K', kb0); rebase('V', vb0)
    for i in range(4): fragread(0, i)
    e("s_waitcnt lgkmcnt(0)"); e("s_barrier")
    for d in ph2: dma(*d)
    def advance():
        st['gen'] = st.get('gen', 0) + 1
        e(f"s_mov_b32 s{sH0}, s{sH1}")
        for k in (8, 12, 16): e(f"s_mov_b32 s{k+2}, s{64+2}")
        e(f"s_add_u32 s{sH1}, s{sH1}, {0 if hit else nwg*HEADB}")
        e(f"s_cmp_lt_u32 s{sIt}, {nheads-1}")
        e(f"s_cselect_b32 s32, {TOTB}, 0"); e(f"s_cselect_b32 s{sH1}, s{sH1}, s{sH0}")
        for k in (64, 68, 72): e(f"s_mov_b32 s{k+2}, s32")
        e.nop(4)
    def entry():
        e.nl += 100
        for i in range(4): e.nl += 1; fid[(0, i)] = e.nl
        e.ldone = e.nl - 4; st['kb'] = kb0; st['vb'] = vb0; wrote.clear()
    vm0 = (dict(vmid), e.nv)
    if pro: assert vmS[1] == e.nv and var; vm0 = vmS
    if var:
        advance(); entry(); body('first', 0, JOIN)
        if pro: e.need_vm(max(vmid[d[0]] for d in ph2))
        pos = len(e.l); fs = (st['kb'], st['vb']); nv1 = e.nv
        e("s_waitcnt lgkmcnt(0)"); e("s_branch L_join")
        vmid.update(vm0[0]); e.nv = vm0[1]
    e.lab("L_loop")
    advance(); entry(); body('main', 0, JOIN)
    if var: assert nv1 == e.nv
    body('main', JOIN, 72)
    rebase('K', kb0); rebase('V', vb0)
    e(f"s_add_u32 s{sIt}, s{sIt}, 1")
    if var:
        sv = e.l; e.l = []; st['kb'], st['vb'] = fs; rebase('K', st['joinstate'][0]); rebase('V', st['joinstate'][1])
        e.l = sv[:pos] + e.l + sv[pos:]
        e(f"s_cmp_lt_u32 s{sIt}, {nheads}"); e("s_cbranch_scc1 L_loop")
        entry(); e.nop(8); e("s_waitcnt lgkmcnt(0)")
        for i in range(4): fragread(1, i)
        if not tl: body('last', 0, 72)
        else:
            lastdma = e.nv
            wrap = [it for gi in range(24) for n_, it in enumerate(fill[gi]) if n_ < nwrap[gi]]
            assert all(isinstance(it, str) for it in wrap)
            L = []; pend = []; lim = {}
            for x in range(3):
                for k in range(3):
                    blk = list(pairs[x][k])
                    if x == 0 and k == 1: blk = wrap + ['MARK'] + blk
                    L += blk[:24] + pend + blk[24:]
                    L += [('rd', x, k, rp, S(0) + 8 * rp) for rp in range(2)]
                    pend = [('st', x, k, rp, S(0) + 8 * rp, j) for rp in range(2) for j in range(2)]
                if x == 0: L.append('ENDA')
            L += pend
            p = 0
            for m in range(24):
                G, i = (1, m) if m < 12 else (3, m - 12)
                ty, x, t = group_desc(G)
                if m == 12:
                    while 'MARK' in L[p:]:
                        if L[p] != 'MARK': emit(L[p])
                        p += 1
                e.need_lds(fid[(G, i)])
                ks, d = kd(i)
                mf(Or(x,d), r(Fr(i),4), r(S(x)+4*ks,4), Or(x,d))
                if i < 8: fragread(G, i + 4)
                elif G == 1: fragread(3, i - 8)
                for _ in range(tn):
                    if L[p] == 'ENDA': break
                    if L[p] != 'MARK': emit(L[p])
                    p += 1
            for it in L[p:]:
                if it == 'ENDA': e.need_vm(lastdma); e("s_barrier")
                elif it != 'MARK': emit(it)
    else:
        e("s_branch L_loop")
        e.lab("L_tail")
        e.nl, e.ldone, rb_, st['kb'] = st['tailstate']; rbid.update(rb_); e.hist = []
        e.nop(12)
        for gi in range(72, 864):
            for it in fill[gi][nsm[gi]:]:
                if not (isinstance(it, tuple) and it[0] == 'q'): emit(it)
    if stamp:
        e("s_waitcnt vmcnt(0)")
        e("s_memtime s[56:57]"); e("s_memrealtime s[58:59]"); e("s_waitcnt lgkmcnt(0)")
        e("s_sub_u32 s56, s56, s48"); e("s_sub_u32 s57, s58, s50"); e(f"s_mov_b32 s54, {64 if stamp == 2 else 0x100000}"); e("s_mov_b32 s55, 0x20000"); e("s_and_b32 s53, s53, 0xffff")
        e("v_mov_b32 v0, s56"); e("v_mov_b32 v1, s57"); e("v_mov_b32 v2, s50"); e("v_mov_b32 v3, s48")
        e(f"s_lshl_b32 s62, s2, 2"); e(f"s_add_u32 s62, s62, s{sW}"); e(f"s_lshl_b32 s62, s62, {2 if stamp == 2 else 5}"); e("v_mov_b32 v6, s62"); e("s_mov_b64 exec, 1")
        e("buffer_store_dwordx4 v[0:3], v6, s[52:55], 0 offen") if stamp != 2 else (e(f"s_cmp_eq_u32 s{sW}, 0"), e("s_cbranch_scc0 L_end"), e("buffer_store_dwordx4 v[0:3], v6, s[52:55], 0 offen"))
    e.lab("L_end"); e("s_endpgm")
    for (x, tag) in slow:
        e.lab(f"L_slow{tag}"); e.hist = []
        e.nop(2)
        for s_ in (f"v_mov_b32 v{t1}, v{t0}", f"v_permlane32_swap_b32 v{t0}, v{t1}", f"v_max_f32 v{t0}, v{t0}, v{t1}", f"v_mul_f32 v{t0}, s{sC}, v{t0}",
                   f"v_max_f32 v{t0}, v{t0}, v{vM+x}", f"v_sub_f32 v{t1}, v{vM+x}, v{t0}", f"v_exp_f32 v{t1}, v{t1}", f"v_mov_b32 v{vM+x}, v{t0}"): e(s_)
        e(f"v_mul_f32 v{vL+x}, v{vL+x}, v{t1}")
        for d in range(6):
            f, b = Oreg(x, d)
            for i in range(16):
                if f == 'v': e(f"v_mul_f32 v{b+i}, v{b+i}, v{t1}")
                else:
                    e(f"v_accvgpr_read_b32 v{t0}, a{b+i}"); e(f"v_mul_f32 v{t0}, v{t0}, v{t1}"); e(f"v_accvgpr_write_b32 a{b+i}, v{t0}")
        e.nop(2)
        e(f"s_branch L_ret{tag}")
    hdr = f"""; MHA forward, B*H=1024 heads, S=384, D=192, bf16.  Generated by gen/gen3.py
; @launch grid=({nwg},1,1) block=(256,1,1) lds={LDSB}
.amdgcn_target "amdgcn-amd-amdhsa--gfx950"
.text
.globl {NAME}_kernel
.p2align 8
.type {NAME}_kernel,@function
{NAME}_kernel:
"""
    ftr = f"""
.section .rodata,"a"
.p2align 6
.amdhsa_kernel {NAME}_kernel
  .amdhsa_next_free_vgpr 512
  .amdhsa_next_free_sgpr 96
  .amdhsa_accum_offset 256
  .amdhsa_group_segment_fixed_size 0
  .amdhsa_kernarg_size 48
  .amdhsa_user_sgpr_count 2
  .amdhsa_user_sgpr_kernarg_segment_ptr 1
  .amdhsa_system_sgpr_workgroup_id_x 1
.end_amdhsa_kernel
"""
    return hdr + "\n".join(e.l) + ftr

if __name__ == "__main__":
    kw = {}
    for a in sys.argv[2:]:
        k, v = a.split("="); kw[k] = eval(v)
    open(sys.argv[1], "w").write(build(**kw))
```
